```python
import torch

def _softmax(x, axis=-1):
    return torch.softmax(x, dim=axis)
def _gelu(x):
    return torch.nn.functional.gelu(x, approximate="tanh")
def _silu(x):
    return torch.nn.functional.silu(x)
def _sigmoid(x):
    return torch.sigmoid(x)
def _layernorm(x, axis=-1, eps=1e-5):
    m = x.mean(dim=axis, keepdim=True)
    v = x.var(dim=axis, keepdim=True, unbiased=False)
    return (x - m) / torch.sqrt(v + eps)
def _scatter_add(tgt, idx, src, axis=0):
    return tgt.clone().index_add_(axis, idx, src)
def _segment_sum(src, seg, n):
    out = torch.zeros((n,) + src.shape[1:], dtype=src.dtype)
    return out.index_add_(0, seg, src)
def _pad(x, pw):
    flat = tuple(v for pair in reversed(pw) for v in pair)
    return torch.nn.functional.pad(x, flat)

kernel_name = 'standalone__instancenorm__prompt'

def setup_inputs():

    _w = (lambda a: (lambda t: t.to(torch.bfloat16) if t.is_floating_point() else t)(torch.as_tensor(a)))
    B, C, H, W = 1, 512, 2048, 32
    return {
        "x": _w(abs((lambda *s: torch.randn(*s, dtype=torch.bfloat16) * 0.05)(B, C, H, W))),
        "g": _w((lambda *s: torch.randn(*s, dtype=torch.bfloat16) * 0.05)(C) + 1.0),
        "b": _w((lambda *s: torch.randn(*s, dtype=torch.bfloat16) * 0.4)(C)),
    }

def reference(x, g, b):
    mu = x.mean(axis=(-2, -1), keepdims=True)
    var = ((x - mu) ** 2).mean(axis=(-2, -1), keepdims=True)
    xhat = (x - mu) / torch.sqrt(var + 1e-5)
    return xhat * g.reshape(1, -1, 1, 1) + b.reshape(1, -1, 1, 1)
```

```python
import argparse, struct, inspect

NAME = "standalone__instancenorm__prompt_kernel"
SLOT0 = 0x100000
SIG = 0x80000
DEF_SCHED = ("p0 YD t16 R0 OD BAR C0 F0 s Z l s2 l s t l s2 bar t2 l s2 t2 l s2 t2 l s t R1 s BAR l C1 P1 s2 l s Q1 s t G1 F1 "
             "s2 l s2 bar t s l s3 t BAR l2 bar Y t5 R2 V BAR C2 P2 G2 F2 s8")

HEADER = """; Kernarg layout for this problem (48 bytes, ptrs only, base s[0:1]):
; @launch grid=(256,1,1) block=(512,1,1) lds=256
;
;
;
"""

def f2u(x):
    return "0x%08x" % struct.unpack("<I", struct.pack("<f", x))[0]

def gen(sched=DEF_SCHED, nvwg=16, thr=3, two=1, nb=4, stamps=0, spin=200000, pf=1, dsleep=12, px=1, xtry=4, sw=0, mini=0, pad=0, force=-1, ocnt=4, omax=16, wdiag=0, rdiag=0, coh=0, b2swap=0, cfix=0, raw=0, lo1='01234567', lo2='01234567', so1='01234567', so2='01234567', far2=0, enc=-1, encm=5, encs=0, tl=0, encw=0, nowait=1, e0=0, e1=32, esh=11, el0=0, el1=64, qx=0, lay=1, ahi=0, exact=0, addonly=0, pb=0, nomax=0, oddk=-1, zthr=2, far1=0, fflip=0):
    L = []
    A = L.append
    A(HEADER.rstrip())
    A('.amdgcn_target "amdgcn-amd-amdhsa--gfx950"')
    A(".text")
    if pad:
        A("; unreachable filler: puts the entry into the other 8 KiB class than the kernel descriptor, so that both dies start alike")
        A(f".p2align 8\n.fill {64*pad}, 4, 0xbf810000")
    A(f".globl {NAME}"); A(".p2align 8"); A(f".type {NAME},@function"); A(f"{NAME}:")
    sWAVE, sCH, sQ, sRB, sGB = 24, 25, 26, 28, 29
    sOFFA = [32, 33, 34, 35]; sOFFB = {1: [36, 37], 2: [38, 39]}
    sMASK, sONE, sK = 40, 41, 42
    sG, sB = 44, 46
    sVW = 48; sTAG = 49
    sPOLL = 52
    sSLOT = 56; sPART = 57
    sCNT = 58; sSKIP = 51
    sT = 60
    stamp_regs = [70, 72, 74, 76, 78, 80]
    def stamp(i):
        if stamps: A(f"    s_memrealtime s[{stamp_regs[i]}:{stamp_regs[i]+1}]")
    vOFF, vLDS, vT = 1, 2, 4
    vS = {0: 12, 1: 14, 2: 12}
    vH = {1: 16, 2: 18}
    vAC = {0: 20, 1: 24, 2: 12}
    vDUM = 28
    D0 = 32
    D = {0: D0, 1: D0 + 64, 2: D0 + 96}
    NL = {0: 16, 1: 8, 2: 8}
    UN = {0: "A", 1: "B1", 2: "B2"}
    issued = []
    stamp(0)
    A("    s_load_dwordx8 s[4:11], s[0:1], 0        ; x, g, b, out")
    A("    s_cmpk_ge_u32 s2, 256")
    A("    s_cbranch_scc1 L_end")
    A("    s_setprio 2")
    A("    v_lshrrev_b32 v2, 6, v0                  ; wave")
    A("    v_and_b32 v1, 63, v0")
    A("    v_lshlrev_b32 v1, 4, v1")
    A("    v_lshl_add_u32 v1, v2, 14, v1")
    if lay >= 2:
        A(f"    s_andn2_b32 s{sCH}, s2, 15")
        A(f"    s_and_b32 s{sT}, s2, 3")
        A(f"    s_lshl2_add_u32 s{sCH}, s{sT}, s{sCH}")
        A(f"    s_bfe_u32 s{sT}, s2, 0x20002")
        A(f"    s_add_u32 s{sCH}, s{sCH}, s{sT}")
        if ahi: A(f"    s_add_u32 s{sCH}, s{sCH}, 256")
    else:
        A(f"    s_andn2_b32 s{sCH}, s2, 7")
        if qx: A(f"    s_xor_b32 s{sCH}, s{sCH}, {qx*8}")
        A(f"    s_lshl_b32 s{sCH}, s{sCH}, 1")
        A(f"    s_and_b32 s{sT}, s2, 3")
        A(f"    s_lshl2_add_u32 s{sCH}, s{sT}, s{sCH}")
        A("    s_bitcmp1_b32 s2, 2")
        A(f"    s_addc_u32 s{sCH}, s{sCH}, 0")
    A(f"    s_lshl_b32 s{sT}, s{sCH}, 17")
    def first_loads():
        A("    v_and_b32 v3, 3, v2")
        A("    v_lshl_add_u32 v3, v3, 12, v1")
        A(f"    v_add_u32 v3, s{sT}, v3")
        if mini == 2 and nowait:
            A(f"    s_cmp_lt_u32 s2, {nvwg}")
            A(f"    s_cselect_b32 s62, s{sWAVE}, 0")
            A("    s_cmp_ge_u32 s62, 6")
            A("    s_cbranch_scc1 L_probe")
            A("    s_waitcnt lgkmcnt(0)")
            A("L_first:")
        else:
            A("    s_waitcnt lgkmcnt(0)")
        for k in range(4):
            r = D[0] + 4 * k
            A(f"    global_load_dwordx4 v[{r}:{r+3}], v3, s[4:5] offset:{1024*k} nt")
            issued.append(("L", 0, k))
        if stamps > 1: stamp(1)
    if mini == 1: first_loads()
    A("    s_load_dwordx4 s[12:15], s[0:1], 32")
    A(f"    v_readfirstlane_b32 s{sWAVE}, v2")
    if pf:
        A("    s_getpc_b64 s[30:31]")
        A("L_pc:")
        A("    v_lshlrev_b32 v4, 7, v0")
        if cfix: A("    v_mov_b32 v28, 0")
        A("    v_min_u32 v4, L_last-L_pc, v4")
        A(f"    s_cmp_lt_u32 s{sWAVE}, {pf}")
        A("    s_cbranch_scc0 L_nopf")
        A(f"    global_load_dword v{vDUM}, v4, s[30:31]")
        A("L_nopf:")
    A(f"    s_lshr_b32 s{sQ}, s{sCH}, 4")
    if lay >= 2:
        A(f"    s_mov_b32 s{sOFFA[0]}, s{sT}")
    else:
        A(f"    s_lshl_b32 s{sRB}, s{sQ}, 21")
        A(f"    s_sub_u32 s{sOFFA[0]}, s{sT}, s{sRB}")
    A(f"    s_and_b32 s{sT+2}, s{sWAVE}, 3")
    A(f"    s_lshl_b32 s{sT+2}, s{sT+2}, 12")
    A(f"    s_add_u32 s{sOFFA[0]}, s{sOFFA[0]}, s{sT+2}")
    for i in range(1, 4):
        A(f"    s_xor_b32 s{sOFFA[i]}, s{sOFFA[0]}, {4096*i:#x}")
    A("    s_mov_b32 s18, 0x4000000" if lay >= 2 else "    s_mov_b32 s18, 0x200000")
    A("    s_mov_b32 s19, 0x20000")
    if mini == 2 and not nowait:
        A(f"    s_cmp_lt_u32 s2, {nvwg}")
        A(f"    s_cselect_b32 s62, s{sWAVE}, 0")
        A("    s_cmp_ge_u32 s62, 6")
        A("    s_cbranch_scc1 L_probe")
        A("L_first:")
    if mini in (0, 2): first_loads()
    if mini < 0: A("    s_waitcnt lgkmcnt(0)")
    if lay >= 2:
        A("    s_mov_b32 s16, s4")
        A("    s_and_b32 s17, s5, 0xffff")
    else:
        A(f"    s_add_u32 s16, s4, s{sRB}")
        A("    s_addc_u32 s17, s5, 0")
        A("    s_and_b32 s17, s17, 0xffff")
    BACK = "L_first" if mini == 2 else "L_novote"
    if mini == 2:
        A("    s_branch L_novote")
        A("L_probe:")
    else:
        A(f"    s_cmp_lt_u32 s2, {nvwg}")
        A("    s_cbranch_scc0 L_novote")
    A(f"    s_cmp_eq_u32 s{sWAVE}, {sw}")
    A("    s_cbranch_scc0 L_tally")
    if pb:
        A("    s_lshr_b32 s64, s2, 2")
        A("    s_xor_b32 s64, s64, s2")
        A("    s_bfe_u32 s64, s64, 0x10001")
        A("    s_lshl_b32 s62, s2, 8")
        A("    s_or_b32 s62, s62, s64")
        A("    s_lshl_b32 s62, s62, 13")
        A("    s_add_u32 s62, s62, 0x20c0300")
    else:
        if lay >= 2:
            A("    s_lshr_b32 s64, s2, 3")
            A("    s_xor_b32 s64, s64, s2")
        else:
            A(f"    s_xor_b32 s64, s{sQ}, s2")
        A("    s_and_b32 s64, s64, 1")
        A("    s_lshl_b32 s65, s64, 13")
        A(f"    s_add_u32 s62, s{sT}, s65")
        A("    s_xor_b32 s62, s62, 0x1cf00" if lay >= 2 else "    s_xor_b32 s62, s62, 0x5d700")
    A("    s_xor_b32 s66, s62, 0x2000")
    if mini > 0: A("    s_waitcnt lgkmcnt(0)")
    A("    s_load_dword s67, s[4:5], s62 glc")
    A("    s_load_dword s68, s[4:5], s66 glc")
    if two:
        A("    s_waitcnt lgkmcnt(0)")
        A("    s_load_dword s67, s[4:5], s62 glc")
        A("    s_load_dword s68, s[4:5], s66 glc")
    A("    s_waitcnt lgkmcnt(1)")
    A("    s_getreg_b32 s69, hwreg(HW_REG_XCC_ID)")
    A("    s_lshr_b32 s65, s69, 2")
    A("    s_xor_b32 s64, s64, s65")
    A("    s_xor_b32 s64, s64, s2" if pb else f"    s_xor_b32 s64, s64, s{sQ}")
    A("    s_and_b32 s64, s64, 1")
    A("    s_cselect_b32 s65, 8, 16")
    A("    s_lshl_b32 s65, 1, s65")
    A("    s_add_u32 s65, s65, 1")
    A("    s_getreg_b32 s66, hwreg(HW_REG_IB_STS, 8, 4)")
    A("    s_cmp_eq_u32 s66, 1")
    A("    s_cselect_b32 s69, s65, 1")
    A("    s_atomic_add s69, s[12:13], 192")
    A(f"    s_branch {BACK}")
    A("L_tally:")
    if mini == 2 and nowait: A("    s_waitcnt lgkmcnt(0)")
    if mini != 2:
        A(f"    s_cmp_eq_u32 s{sWAVE}, {sw ^ 1}")
        A("    s_cbranch_scc0 L_novote")
    A(f"    s_cmp_eq_u32 s2, {nvwg-1}")
    A(f"    s_cbranch_scc0 {BACK}")
    A(f"    s_mov_b32 s63, {SLOT0:#x}")
    A("    s_mov_b32 s62, 0")
    if mini > 0 and not (mini == 2 and nowait): A("    s_waitcnt lgkmcnt(0)")
    A("    s_load_dword s63, s[14:15], s63 offset:4")
    if addonly: A("    s_load_dword s68, s[12:13], 128 glc")
    A("L_tpoll:")
    A("    s_load_dword s66, s[12:13], 192 glc")
    A("    s_add_u32 s62, s62, 1")
    A("    s_waitcnt lgkmcnt(0)")
    A("    s_bfe_u32 s64, s66, 0x80008")
    A("    s_bfe_u32 s65, s66, 0x80010")
    A("    s_absdiff_i32 s67, s64, s65")
    A(f"    s_cmp_ge_u32 s67, {thr}")
    A("    s_cbranch_scc1 L_decide")
    A("    s_and_b32 s67, s66, 0xff")
    A(f"    s_cmp_ge_u32 s67, {nvwg}")
    A("    s_cbranch_scc1 L_decide")
    A("    s_cmp_lt_u32 s62, 12")
    A("    s_cbranch_scc1 L_tpoll")
    A("L_decide:")
    A("    s_cmp_gt_u32 s64, s65")
    A("    s_cselect_b32 s65, 24, 16")
    if force >= 0: A(f"    s_mov_b32 s65, {16 + 8*force}")
    A("    s_getreg_b32 s69, hwreg(HW_REG_XCC_ID)")
    A("    s_sub_u32 s69, s69, s2")
    A("    s_and_b32 s69, s69, 7")
    A("    s_or_b32 s65, s65, s69")
    A("    s_lshl_b32 s65, s65, 24")
    A("    s_and_b32 s66, s66, 0xffffff")
    A("    s_or_b32 s64, s66, s65")
    A("    s_add_u32 s65, s63, 0x9e3779b9")
    if addonly:
        A("    s_cmp_eq_u32 s68, 0")
        A("    s_cselect_b64 s[64:65], s[64:65], 0")
        for o in (0, 64, 128):
            A(f"    s_atomic_add_x2 s[64:65], s[12:13], {o}")
    else:
        A("    s_mov_b64 s[66:67], 0")
        for o in (0, 64, 128):
            A(f"    s_atomic_cmpswap_x2 s[64:67], s[12:13], {o}")
    if mini == 2: A("    s_branch L_first")
    A("L_novote:")
    def soff(u, k):
        if u == 2 and (far2 >> k) & 1: return 50
        if u == 1 and (far1 >> k) & 1: return 50
        return sOFFA[k // 4] if u == 0 else sOFFB[u][k // 4]
    def voff(u, k):
        if not (u and (coh >> (8 * (u - 1) + k)) & 1): return 1
        page = (k // 4) ^ (b2swap if u == 2 else 0)
        return 28 if (cfix and page == 0) else 29
    def load(u, k):
        vOFF = voff(u, k)
        r = D[u] + 4 * k
        A(f"    buffer_load_dwordx4 v[{r}:{r+3}], v{vOFF}, s[16:19], s{soff(u,k)} offen offset:{(k%4)*1024} nt")
        issued.append(("L", u, k))
    normed = set(); started = set(); unpacked = set()
    def norm(u, k):
        r0 = D[u] + 4 * k
        ac = vAC[u]
        if exact == 1 and (u, k) not in unpacked:
            for j in range(4):
                A(f"    v_dot2_f32_bf16 v{4+2*j}, v{r0+j}, s30, v{ac+1}")
                A(f"    v_dot2_f32_bf16 v{5+2*j}, v{r0+j}, s31, v{ac+1}")
            for j in range(4):
                t = 4 + 2 * j
                A(f"    v_pk_fma_f32 v[{t}:{t+1}], v[{t}:{t+1}], v[{ac}:{ac+1}], v[{ac+2}:{ac+3}] op_sel_hi:[1,0,0]")
            for j in range(4):
                A(f"    v_cvt_pk_bf16_f32 v{r0+j}, v{4+2*j}, v{5+2*j}")
            normed.add((u, k))
            return
        for j in range(4):
            r = r0 + j
            if (u, k) in unpacked:
                t = D[0] + 8 * k + 2 * j
                if exact: A(f"    v_pk_add_f32 v[{t}:{t+1}], v[{t}:{t+1}], v[{ac}:{ac+1}] op_sel:[0,1] op_sel_hi:[1,1]")
                A(f"    v_pk_fma_f32 v[{t}:{t+1}], v[{t}:{t+1}], v[{ac}:{ac+1}], v[{ac+2}:{ac+3}] op_sel_hi:[1,0,0]")
                A(f"    v_cvt_pk_bf16_f32 v{r}, v{t}, v{t+1}")
                continue
            t = vT + 2 * (j & 1)
            A(f"    v_lshlrev_b32 v{t}, 16, v{r}")
            A(f"    v_and_b32 v{t+1}, s{sMASK}, v{r}")
            if exact: A(f"    v_pk_add_f32 v[{t}:{t+1}], v[{t}:{t+1}], v[{ac}:{ac+1}] op_sel:[0,1] op_sel_hi:[1,1]")
            A(f"    v_pk_fma_f32 v[{t}:{t+1}], v[{t}:{t+1}], v[{ac}:{ac+1}], v[{ac+2}:{ac+3}] op_sel_hi:[1,0,0]")
            A(f"    v_cvt_pk_bf16_f32 v{r}, v{t}, v{t+1}")
        normed.add((u, k))
    def store(u, k):
        vOFF = voff(u, k)
        if (u, k) not in normed: norm(u, k)
        r0 = D[u] + 4 * k
        A(f"    buffer_store_dwordx4 v[{r0}:{r0+3}], v{vOFF}, s[20:23], s{soff(u,k)} offen offset:{(k%4)*1024} sc0 sc1")
        issued.append(("S", u, k))
    def tally(u, k):
        i = issued.index(("L", u, k))
        A(f"    s_waitcnt vmcnt({min(63, len(issued) - 1 - i)})")
        s = vS[u]
        for j in range(4):
            r = D[u] + 4 * k + j
            if u not in started:
                started.add(u)
                A(f"    v_mov_b32 v{s}, 0")
                A(f"    v_mov_b32 v{s+1}, 0")
            A(f"    v_dot2c_f32_bf16 v{s}, s{sONE}, v{r}")
            A(f"    v_dot2c_f32_bf16 v{s+1}, v{r}, v{r}")
    def reduce(u):
        nl = NL[u] * 8
        s = vS[u]
        A("    s_nop 2")
        A(f"    v_mul_f32 v8, {f2u(1.0/nl)}, v{s}")
        A(f"    v_fma_f32 v10, -v8, v{s}, v{s+1}")
        A(f"    v_readfirstlane_b32 s{sK}, v8              ; pivot")
        A(f"    v_mov_b32 v3, s{sWAVE}")
        A("    v_lshlrev_b32 v3, 3, v3")
        A(f"    v_subrev_f32 v8, s{sK}, v8")
        A(f"    v_mul_f32 v9, {f2u(float(nl))}, v8")
        A("    v_fmac_f32 v10, v9, v8")
        for dpp in ["quad_perm:[1,0,3,2] row_mask:0xf", "quad_perm:[2,3,0,1] row_mask:0xf", "row_half_mirror row_mask:0xf",
                    "row_mirror row_mask:0xf", "row_bcast:15 row_mask:0xa", "row_bcast:31 row_mask:0xc"]:
            A("    s_nop 0")
            A(f"    v_add_f32_dpp v8, v8, v8 {dpp} bank_mask:0xf")
            A(f"    v_add_f32_dpp v10, v10, v10 {dpp} bank_mask:0xf")
        A(f"    v_mul_f32 v9, {f2u(nl/64.0)}, v8")
        A("    v_fma_f32 v11, -v9, v8, v10")
        A(f"    v_mov_b32 v10, s{sK}")
        A(f"    v_fmac_f32 v10, {f2u(1.0/64)}, v8")
        A("    s_mov_b32 exec_lo, 0")
        A("    s_brev_b32 exec_hi, 1")
        A(f"    ds_write_b64 v3, v[10:11] offset:{64*u}")
        A("    s_mov_b64 exec, -1")
    def combine(u):
        nel = NL[u] * 512
        A(f"    ds_read_b64 v[10:11], v{vLDS} offset:{64*u}")
        A("    s_waitcnt lgkmcnt(0)")
        steps = ["quad_perm:[1,0,3,2]", "quad_perm:[2,3,0,1]", "row_half_mirror"]
        for i, dpp in enumerate(steps):
            src = "v10" if i == 0 else "v8"
            if i: A("    s_nop 1")
            A(f"    v_add_f32_dpp v8, {src}, {src} {dpp} row_mask:0xf bank_mask:0xf")
        A(f"    v_mul_f32 v8, 0x3e000000, v8")
        A("    v_sub_f32 v9, v10, v8")
        A(f"    v_mul_f32 v10, {f2u(float(nel))}, v9")
        A("    v_fma_f32 v11, v10, v9, v11")
        for dpp in steps:
            A("    s_nop 1")
            A(f"    v_add_f32_dpp v11, v11, v11 {dpp} row_mask:0xf bank_mask:0xf")
    def finalize(u):
        ac = vAC[u]
        if u == 0:
            A(f"    s_and_b32 s{sT}, s{sCH}, 1")
            A(f"    s_lshl_b32 s{sT}, s{sT}, 4")
            A(f"    s_lshr_b32 s{sT+1}, s{sG}, s{sT}")
            A(f"    s_lshl_b32 s{sT+1}, s{sT+1}, 16")
            A(f"    s_lshr_b32 s{sT+2}, s{sB}, s{sT}")
            A(f"    s_lshl_b32 s{sT+2}, s{sT+2}, 16")
        elif lay == 3:
            A(f"    s_and_b32 s{sT}, s2, 8")
            A(f"    s_lshl_b32 s{sT}, s{sT}, 1")
            A(f"    s_lshr_b32 s{sT+1}, s{sG+1 if u == 1 else 50}, s{sT}")
            A(f"    s_lshl_b32 s{sT+1}, s{sT+1}, 16")
            A(f"    s_lshr_b32 s{sT+2}, s{sB+1 if u == 1 else 59}, s{sT}")
            A(f"    s_lshl_b32 s{sT+2}, s{sT+2}, 16")
        elif u == 1:
            A(f"    s_lshl_b32 s{sT+1}, s{sG+1}, 16")
            A(f"    s_lshl_b32 s{sT+2}, s{sB+1}, 16")
        else:
            A(f"    s_and_b32 s{sT+1}, s{sG+1}, s{sMASK}")
            A(f"    s_and_b32 s{sT+2}, s{sB+1}, s{sMASK}")
        A("    v_cvt_pk_bf16_f32 v9, v8, v8")
        A("    v_lshlrev_b32 v9, 16, v9                 ; mu")
        A("    v_sub_f32 v8, v8, v9")
        A("    v_mul_f32 v8, v8, v8")
        A(f"    v_fmac_f32 v8, {f2u(1.0/65536)}, v11")
        if not nomax: A("    v_max_f32 v8, 0, v8")
        A("    v_cvt_pk_bf16_f32 v8, v8, v8")
        A("    v_lshlrev_b32 v8, 16, v8")
        A(f"    v_add_f32 v8, {f2u(1e-5)}, v8")
        A("    v_cvt_pk_bf16_f32 v8, v8, v8")
        A("    v_lshlrev_b32 v8, 16, v8")
        A("    v_sqrt_f32 v8, v8")
        A("    s_nop 0")
        A("    v_cvt_pk_bf16_f32 v8, v8, v8")
        A("    v_lshlrev_b32 v8, 16, v8")
        A("    v_rcp_f32 v8, v8")
        A(f"    v_mov_b32 v{ac+2}, s{sT+2}")
        A(f"    v_mul_f32 v{ac}, s{sT+1}, v8               ; a = g/s")
        if exact: A(f"    v_xor_b32 v{ac+1}, 0x80000000, v9          ; -mu")
        else: A(f"    v_fma_f32 v{ac+2}, -v9, v{ac}, v{ac+2}         ; c = b - mu*a")
    def publish(u):
        A(f"    ; --- {UN[u]}: hand {{mean, tag, M2, tag}} of this half to the partner (one copy per reading wave, whole lines)")
        A(f"    v_mov_b32 v{vH[u]}, v8")
        A(f"    v_mov_b32 v{vH[u]+1}, v11")
        A(f"    s_cmp_eq_u32 s{sWAVE}, 0")
        A(f"    s_cbranch_scc0 L_nopub{u}")
        A(f"    v_mov_b32 v9, s{sTAG}")
        A("    v_mov_b32 v10, v11")
        A(f"    v_mov_b32 v11, s{sTAG}")
        A(f"    v_lshl_add_u32 v3, v0, 4, s{sSLOT}")
        A(f"    global_store_dwordx4 v3, v[8:11], s[14:15] offset:{2048*(u-1)} sc0 sc1")
        A("    s_nop 1")
        A(f"L_nopub{u}:")
    pre = set()
    def poll(u):
        A(f"    s_load_dwordx4 s[{sPOLL}:{sPOLL+3}], s[14:15], s{sPART} offset:{2048*(u-1)} glc")
    def partner(u):
        A(f"    ; --- {UN[u]}: wait for the partner's half and merge")
        A(f"    s_mov_b32 s{sCNT}, 0")
        if u in pre: A(f"    s_branch L_chk{u}")
        A(f"L_poll{u}:")
        poll(u)
        A(f"    s_add_u32 s{sCNT}, s{sCNT}, 1")
        A(f"    s_cmp_lt_u32 s{sCNT}, {spin}")
        A("    s_cbranch_scc0 L_end")
        A(f"L_chk{u}:")
        A("    s_waitcnt lgkmcnt(0)")
        A(f"    s_xor_b32 s{sT}, s{sPOLL+1}, s{sTAG}")
        A(f"    s_xor_b32 s{sT+1}, s{sPOLL+3}, s{sTAG}")
        A(f"    s_or_b32 s{sT}, s{sT}, s{sT+1}")
        A(f"    s_cbranch_scc1 L_poll{u}")
        if stamps: A(f"    s_mov_b32 s{82+u}, s{sCNT}")
        A(f"    v_add_f32 v8, s{sPOLL}, v{vH[u]}")
        A(f"    v_subrev_f32 v9, s{sPOLL}, v{vH[u]}")
        A(f"    v_add_f32 v11, s{sPOLL+2}, v{vH[u]+1}")
        A("    v_mul_f32 v8, 0.5, v8")
        A(f"    v_mul_f32 v10, {f2u(16384.0)}, v9")
        A("    v_fmac_f32 v11, v10, v9")
    ndec = [0]
    def decision():
        n = ndec[0]; ndec[0] += 1
        A(f"    s_mov_b32 s{sCNT}, 0")
        A(f"L_dtry{n}:")
        A(f"    s_lshl_b32 s{sT}, s{sCNT}, 6")
        A(f"    s_load_dwordx2 s[{sVW}:{sVW+1}], s[12:13], s{sT}")
        A(f"L_dchk{n}:")
        A("    s_waitcnt lgkmcnt(0)")
        A(f"    s_cmp_lg_u32 s{sVW}, 0")
        A(f"    s_cbranch_scc1 L_dgot{n}")
        A(f"    s_add_u32 s{sCNT}, s{sCNT}, 1")
        A(f"    s_sleep {dsleep}")
        A(f"    s_cmp_lt_u32 s{sCNT}, 3")
        A(f"    s_cbranch_scc1 L_dtry{n}")
        A(f"    s_cmp_lt_u32 s{sCNT}, {spin}")
        A("    s_cbranch_scc0 L_end")
        A("    v_mov_b32 v3, 0")
        A(f"    global_load_dwordx2 v[{vT}:{vT+1}], v3, s[12:13] sc1")
        A("    s_waitcnt vmcnt(0)")
        A(f"    v_readfirstlane_b32 s{sVW}, v{vT}")
        A(f"    v_readfirstlane_b32 s{sVW+1}, v{vT+1}")
        A(f"    s_branch L_dchk{n}")
        A(f"L_dgot{n}:")
        if stamps: A(f"    s_mov_b32 s82, s{sCNT}")
        A(f"    s_lshr_b32 s{sT}, s{sVW}, 24")
        A(f"    s_add_u32 s{sT+1}, s{sT}, s2")
        if oddk >= 0: A(f"    s_and_b32 s27, s{sT+1}, 1")
        A(f"    s_bfe_u32 s{sT+2}, s{sT+1}, 0x10002        ; member = y >> 2")
        if px == 1:
            A(f"    s_xor_b32 s{sT+1}, s{sT+1}, s{sT+2}")
        elif px:
            A(f"    s_mul_i32 s{sT+3}, s{sT+2}, {px}")
            A(f"    s_xor_b32 s{sT+1}, s{sT+1}, s{sT+3}")
        A(f"    s_and_b32 s{sT+1}, s{sT+1}, 3              ; pair")
        A(f"    s_lshr_b32 s{sT}, s{sT}, 3")
        A(f"    s_xor_b32 s{sT}, s{sT}, s{sT+2}")
        if lay == 3:
            A("    s_lshr_b32 s64, s2, 5")
            A(f"    s_xor_b32 s{sT}, s{sT}, s64")
        else:
            A(f"    s_xor_b32 s{sT}, s{sT}, s{sQ}")
        A(f"    s_and_b32 s{sT}, s{sT}, 1")
        if raw:
            A("    s_load_dword s64, s[12:13], 244")
            A("    s_waitcnt lgkmcnt(0)")
            A(f"    s_lshr_b32 s65, s{sVW}, 27")
            A("    s_xor_b32 s64, s64, s65")
            if raw == 1: A("    s_xor_b32 s64, s64, 1")
            A("    s_and_b32 s64, s64, 1")
            A(f"    s_lshl1_add_u32 s{sT}, s{sT}, s64")
            A(f"    s_and_b32 s{sT+3}, s{sWAVE}, 1")
        else:
            A(f"    s_and_b32 s{sT+3}, s{sWAVE}, 1")
            A(f"    s_lshl1_add_u32 s{sT}, s{sT}, s{sT+3}")
        if cfix:
            A("    ; lane layouts whose four 256 B pieces (32 KiB apart) share a memory channel in out, one per page of the wave")
            A(f"    s_lshl2_add_u32 s64, s{sT+3}, s{sT}")
            A("    s_lshr_b32 s65, s10, 12")
            A("    s_xor_b32 s66, s64, 1")
            A("    s_add_u32 s64, s64, s65")
            A("    s_add_u32 s66, s66, s65")
            A("    s_lshr_b32 s64, s64, 3")
            A("    s_lshr_b32 s66, s66, 3")
            A("    v_bfe_u32 v4, v0, 4, 2")
            A("    v_and_b32 v5, 15, v0")
            A("    v_lshlrev_b32 v5, 4, v5")
            A("    v_lshl_add_u32 v5, v4, 15, v5")
            A(f"    v_lshl_add_u32 v5, s{sT+3}, 14, v5")
            A("    v_lshrrev_b32 v6, 7, v0")
            for vr, sr in ((28, 64), (29, 66)):
                A(f"    v_add_u32 v7, s{sr}, v4")
                A("    v_xor_b32 v7, v7, v6")
                A("    v_and_b32 v7, 3, v7")
                A(f"    v_lshl_add_u32 v{vr}, v7, 8, v5")
        A(f"    s_lshl_b32 s{sT}, s{sT}, 12")
        A(f"    s_lshl_b32 s{sT+3}, s{sT+1}, 19")
        A(f"    s_add_u32 s{sT}, s{sT}, s{sT+3}")
        if lay == 3:
            A("    s_lshr_b32 s64, s2, 5")
            A(f"    s_bfe_u32 s{sT+3}, s2, 0x20003")
            A(f"    s_lshl4_add_u32 s{sT+3}, s64, s{sT+3}")
            A(f"    s_add_u32 s{sT+3}, s{sT+3}, 0x100")
            A(f"    s_lshl_b32 s64, s{sT+3}, 17")
            A(f"    s_add_u32 s{sOFFB[1][0]}, s{sT}, s64")
            A(f"    s_xor_b32 s{sOFFB[1][1]}, s{sOFFB[1][0]}, 0x1000")
            A(f"    s_xor_b32 s{sOFFB[2][b2swap]}, s{sOFFB[1][0]}, 0x1000000")
            A(f"    s_xor_b32 s{sOFFB[2][1-b2swap]}, s{sOFFB[1][0]}, 0x1001000")
            A(f"    s_lshl2_add_u32 s{sT}, s{sT+1}, s{sT+3}")
            A(f"    s_andn2_b32 s{sT}, s{sT}, 1")
            A(f"    s_lshl_b32 s{sT}, s{sT}, 1")
            A(f"    s_load_dword s{sG+1}, s[6:7], s{sT}")
            A(f"    s_load_dword s{sB+1}, s[8:9], s{sT}")
            A(f"    s_load_dword s50, s[6:7], s{sT} offset:256")
            A(f"    s_load_dword s59, s[8:9], s{sT} offset:256")
            A(f"    s_lshr_b32 s{sT+3}, s2, 3")
            A(f"    s_lshl2_add_u32 s{sT+1}, s{sT+3}, s{sT+1}")
        elif lay >= 2:
            A(f"    s_and_b32 s{sT+3}, s{sCH}, 0x1f2")
            A(f"    s_xor_b32 s{sT+3}, s{sT+3}, 0x100")
            A(f"    s_lshl_b32 s64, s{sT+3}, 17")
            A(f"    s_add_u32 s{sOFFB[1][0]}, s{sT}, s64")
            A(f"    s_xor_b32 s{sOFFB[1][1]}, s{sOFFB[1][0]}, 0x1000")
            A(f"    s_xor_b32 s{sOFFB[2][b2swap]}, s{sOFFB[1][0]}, 0x20000")
            A(f"    s_xor_b32 s{sOFFB[2][1-b2swap]}, s{sOFFB[1][0]}, 0x21000")
            if far1:
                A(f"    s_lshr_b32 s65, s{sVW}, 27")
                A("    s_xor_b32 s64, s43, s65")
                A(f"    s_xor_b32 s64, s64, s{sWAVE}")
                if fflip: A("    s_xor_b32 s64, s64, 1")
                A("    s_and_b32 s64, s64, 1")
                A("    s_lshl_b32 s64, s64, 13")
                A(f"    s_xor_b32 s50, s{sOFFB[1][0]}, s64")
            A(f"    s_lshl2_add_u32 s{sT}, s{sT+1}, s{sT+3}")
            A(f"    s_lshl_b32 s{sT}, s{sT}, 1")
            A(f"    s_load_dword s{sG+1}, s[6:7], s{sT}")
            A(f"    s_load_dword s{sB+1}, s[8:9], s{sT}")
            A(f"    s_lshr_b32 s{sT+3}, s2, 3")
            A(f"    s_lshl2_add_u32 s{sT+1}, s{sT+3}, s{sT+1}")
        else:
            A(f"    s_xor_b32 s{sOFFB[1][0]}, s{sT}, 0x40000")
            A(f"    s_xor_b32 s{sOFFB[1][1]}, s{sT}, 0x41000")
            A(f"    s_xor_b32 s{sOFFB[2][b2swap]}, s{sT}, 0x60000")
            A(f"    s_xor_b32 s{sOFFB[2][1-b2swap]}, s{sT}, 0x61000")
            if far2: A(f"    s_xor_b32 s50, s{sOFFB[2][0]}, 0x2000")
            A(f"    s_lshl2_add_u32 s{sT+1}, s{sQ}, s{sT+1}")
            A(f"    s_lshl_b32 s{sT}, s{sT+1}, 3")
            A(f"    s_load_dword s{sG+1}, s[6:7], s{sT} offset:4")
            A(f"    s_load_dword s{sB+1}, s[8:9], s{sT} offset:4")
        A(f"    s_lshl2_add_u32 s{sSLOT}, s{sT+1}, s{sT+2}")
        A(f"    s_lshl_b32 s{sSLOT}, s{sSLOT}, 10")
        A(f"    s_add_u32 s{sSLOT}, s{sSLOT}, {SLOT0:#x}")
        A(f"    s_xor_b32 s{sPART}, s{sSLOT}, 0x400")
        A(f"    s_lshl_b32 s{sT+3}, s{sWAVE}, 7")
        A(f"    s_add_u32 s{sPART}, s{sPART}, s{sT+3}")
        stamp(2)
    for k in range(0 if mini < 0 else 4, 16):
        load(0, k)
        if k == (3 if mini < 0 else 7):
            A(f"    s_andn2_b32 s{sT+1}, s{sCH}, 1")
            A(f"    s_lshl_b32 s{sT+1}, s{sT+1}, 1")
            A(f"    s_load_dword s{sG}, s[6:7], s{sT+1}")
            A(f"    s_load_dword s{sB}, s[8:9], s{sT+1}")
            if lay >= 2:
                A("    s_mov_b32 s20, s10")
                A("    s_and_b32 s21, s11, 0xffff")
                A("    s_mov_b32 s22, 0x4000000")
            else:
                A(f"    s_add_u32 s20, s10, s{sRB}")
                A("    s_addc_u32 s21, s11, 0")
                A("    s_and_b32 s21, s21, 0xffff")
                A("    s_mov_b32 s22, 0x200000")
            A("    s_mov_b32 s23, 0x20000")
            A(f"    s_mov_b32 s{sMASK}, 0xffff0000")
            A(f"    s_mov_b32 s{sONE}, 0x3f803f80")
            if exact == 1:
                A("    s_movk_i32 s30, 0x3f80")
                A("    s_mov_b32 s31, 1.0")
            A(f"    s_mov_b64 s[{sSLOT}:{sSLOT+1}], 0")
            if tl & 1: A(f"    s_load_dword s68, s[10:11], s{sT}")
            if far1: A("    s_load_dword s43, s[14:15], 0xF0004")
            if tl & 12: A(f"    s_xor_b32 s{sT+2}, s{sT}, 0x2000000")
            if tl & 4: A(f"    s_load_dword s43, s[4:5], s{sT+2}")
            if tl & 8: A(f"    s_load_dword s59, s[10:11], s{sT+2}")
            if tl & 2: A(f"    s_load_dword s69, s[14:15], 0xc0000")
            if coh and cfix:
                A("    v_mov_b32 v29, 0")
            elif coh:
                A("    v_and_b32 v29, 15, v0")
                A("    v_bfe_u32 v4, v0, 4, 2")
                A("    v_lshlrev_b32 v29, 4, v29")
                A("    v_lshl_add_u32 v29, v4, 15, v29")
                A("    v_lshrrev_b32 v5, 1, v2")
                A("    v_xor_b32 v4, v4, v5")
                A("    v_lshl_add_u32 v29, v4, 8, v29")
                A("    v_and_b32 v4, 1, v2")
                A("    v_lshl_add_u32 v29, v4, 14, v29")
            if wdiag: A("    s_load_dword s90, s[14:15], 0x40")
            A("    v_and_b32 v2, 7, v0")
            A("    v_lshlrev_b32 v2, 3, v2")
            if " o " in sched:
                A("    v_mov_b32 v30, 0")
                A("    v_mov_b32 v31, 0")
                A("    ds_write_b64 v30, v[30:31] offset:192")
                A(f"    s_mov_b32 s{sSKIP}, 99")
    if mini == 1: A("    s_waitcnt lgkmcnt(0)")
    if stamps == 1: stamp(1)
    lq = [(1, int(k)) for k in lo1] + [(2, int(k)) for k in lo2]
    tq = [(0, k) for k in range(16)] + lq
    sq = [(0, k) for k in range(16)] + [(1, int(k)) for k in so1] + [(2, int(k)) for k in so2]
    nq = list(sq)
    first = []; guarded = []
    for tok in sched.split():
        c, arg = tok[0], tok[1:]
        n = int(arg) if arg.isdigit() else None
        if tok == "YD":
            first.extend(lq.pop(0) for _ in range(nb))
            A(f"    s_cmp_lt_u32 s{sWAVE}, 4")
            A("    s_cbranch_scc1 L_skipY")
            decision()
            for op in first: load(*op)
            A("    s_branch L_joinY")
            A("L_skipY:")
            A("    s_waitcnt vmcnt(0)")
            A("L_joinY:")
        elif tok == "OD":
            A(f"    s_cmp_lt_u32 s{sWAVE}, 4")
            A("    s_cbranch_scc0 L_skipO")
            decision()
            keep = len(issued)
            for op in first: load(*op)
            del issued[keep:]
            A("L_skipO:")
        elif tok == "BAR":
            A("    s_waitcnt lgkmcnt(0)")
            A("    s_barrier")
        elif tok == "bar": A("    s_barrier")
        elif tok == "Z":
            A("    ; --- overwrite the own slots with a non-tag so that early polls are served by the memory-side cache")
            A(f"    s_cmp_eq_u32 s{sWAVE}, 0")
            A("    s_cbranch_scc0 L_noz")
            A(f"    v_lshl_add_u32 v3, v0, 4, s{sSLOT}")
            A(f"    s_not_b32 s{sT}, s{sTAG}")
            for i in range(4): A(f"    v_mov_b32 v{vT+i}, s{sT}")
            A(f"    global_store_dwordx4 v3, v[{vT}:{vT+3}], s[14:15] sc0 sc1")
            A(f"    global_store_dwordx4 v3, v[{vT}:{vT+3}], s[14:15] offset:2048 sc0 sc1")
            A(f"    v_add_u32 v3, {SIG:#x}, v3")
            A(f"    global_store_dwordx4 v3, v[{vT}:{vT+3}], s[14:15] sc0 sc1")
            A("    s_nop 1")
            A("L_noz:")
        elif tok == "Y":
            A("    ; --- flag: every load of this workgroup has been issued")
            A(f"    s_cmp_eq_u32 s{sWAVE}, 7")
            A("    s_cbranch_scc0 L_noy")
            A(f"    s_add_u32 s{sT}, s{sSLOT}, {SIG - 7*1024:#x}")
            A(f"    v_lshl_add_u32 v3, v0, 4, s{sT}")
            for i in range(4): A(f"    v_mov_b32 v{vT+i}, s{sTAG}")
            A(f"    global_store_dwordx4 v3, v[{vT}:{vT+3}], s[14:15] sc0 sc1")
            A("    s_nop 1")
            A("L_noy:")
        elif tok == "V":
            A("    ; --- DRAM reads starve behind a burst of writes: before the last stores, give the other workgroups of the")
            A(f"    s_and_b32 s{sT+3}, s{sWAVE}, 1")
            A(f"    s_lshr_b32 s{sT+2}, s{sWAVE}, 1")
            A(f"    s_lshl2_add_u32 s{sT+2}, s{sT+2}, s{sT+3}")
            A(f"    s_lshl_b32 s{sT+2}, s{sT+2}, 10")
            A(f"    s_andn2_b32 s{sT+3}, s{sSLOT}, 0x3fff")
            A(f"    s_add_u32 s{sT+2}, s{sT+2}, s{sT+3}")
            A(f"    s_mov_b32 s{sCNT}, 0")
            A("L_v:")
            A(f"    s_load_dword s{sT}, s[14:15], s{sT+2} offset:{SIG:#x}")
            A(f"    s_add_u32 s{sT+2}, s{sT+2}, 128")
            A(f"    s_add_u32 s{sCNT}, s{sCNT}, 1")
            A("    s_waitcnt lgkmcnt(0)")
            A(f"    s_cmp_eq_u32 s{sT}, s{sTAG}")
            A("    s_cbranch_scc1 L_vd")
            A(f"    s_cmp_lt_u32 s{sCNT}, {xtry}")
            A("    s_cbranch_scc1 L_v")
            A("L_vd:")
        elif c == "g":
            for _ in range(n or 1):
                op = sq.pop(0); nq.remove(op)
                k = len(guarded); guarded.append(op)
                if k == 0:
                    A("    ; --- a workgroup that has fallen behind (hurry flag) puts the rest of these stores off and gets its last loads out")
                    A("    ds_read_b32 v31, v30 offset:192")
                else:
                    A(f"    s_cmp_lt_u32 s{sSKIP}, 99")
                    A(f"    s_cbranch_scc1 L_gs{k}")
                A("    s_waitcnt lgkmcnt(0)")
                A(f"    v_readfirstlane_b32 s{sT}, v31")
                if k == oddk: A(f"    s_or_b32 s{sT}, s{sT}, s27")
                else: A(f"    s_cmp_lg_u32 s{sT}, 0")
                A(f"    s_cselect_b32 s{sSKIP}, {k}, 99")
                A(f"    s_cbranch_scc1 L_gs{k}")
                A("    ds_read_b32 v31, v30 offset:192")
                keep = len(issued)
                store(*op)
                del issued[keep:]
                normed.discard(op)
                A(f"L_gs{k}:")
        elif tok == "e":
            A("    ; --- the stores that were put off")
            A(f"    s_cmp_lt_u32 s{sSKIP}, 99")
            A("    s_cbranch_scc0 L_edone")
            for k, op in enumerate(guarded):
                if k < len(guarded) - 1:
                    A(f"    s_cmp_le_u32 s{sSKIP}, {k}")
                    A(f"    s_cbranch_scc0 L_es{k}")
                keep = len(issued)
                store(*op)
                del issued[keep:]
                A(f"L_es{k}:")
            A("L_edone:")
        elif tok == "o":
            A("    ; --- DRAM reads starve behind a burst of writes, so all workgroups should get their last loads out together:")
            A("    v_mov_b32 v3, 1")
            A(f"    s_cmp_lt_u32 s{sWAVE}, 4")
            A("    s_cbranch_scc1 L_owatch")
            A("    s_mov_b64 exec, 1")
            A("    ds_add_u32 v30, v3 offset:196")
            A("    s_mov_b64 exec, -1")
            A("    s_branch L_odone")
            A("L_owatch:")
            A(f"    s_bfe_u32 s64, s{sSLOT}, 0x2000c")
            A(f"    s_bfe_u32 s65, s{sSLOT}, 0x1000a")
            A("    s_lshl1_add_u32 s64, s64, s65")
            A(f"    s_lshl1_add_u32 s65, s{sWAVE}, s64")
            A("    s_add_u32 s65, s65, 1")
            A("    s_and_b32 s66, s65, 1")
            A("    s_bfe_u32 s65, s65, 0x20001")
            A("    s_lshl2_add_u32 s65, s65, s66")
            A("    s_lshl3_add_u32 s65, s65, s64")
            A("    s_lshl_b32 s65, s65, 7")
            A(f"    s_andn2_b32 s66, s{sSLOT}, 0x3fff")
            A("    s_add_u32 s66, s66, s65")
            A(f"    s_mov_b32 s{sCNT}, 0")
            A("L_oloop:")
            A(f"    s_load_dword s{sT}, s[14:15], s66 offset:{SIG:#x} glc")
            A(f"    s_add_u32 s{sCNT}, s{sCNT}, 1")
            A("    s_waitcnt lgkmcnt(0)")
            A(f"    s_cmp_eq_u32 s{sT}, s{sTAG}")
            A("    s_cbranch_scc1 L_ohit")
            A("    ds_read_b64 v[4:5], v30 offset:192")
            A("    s_waitcnt lgkmcnt(0)")
            A("    v_lshl_add_u32 v4, v4, 2, v5")
            A(f"    s_cmp_ge_u32 s{sCNT}, {omax}")
            A(f"    v_readfirstlane_b32 s{sT}, v4")
            A("    s_cbranch_scc1 L_odone")
            A(f"    s_cmp_lt_u32 s{sT}, {ocnt}")
            A("    s_cbranch_scc1 L_oloop")
            A("    s_branch L_odone")
            A("L_ohit:")
            A("    ds_write_b32 v30, v3 offset:192")
            A("L_odone:")
        elif c == "l":
            for _ in range(n or 1): load(*lq.pop(0))
        elif c == "s":
            for _ in range(n or 1):
                op = sq.pop(0)
                if op in nq: nq.remove(op)
                store(*op)
        elif c == "y":
            for _ in range(n or 1):
                op = sq.pop(0); nq.remove(op)
                store(*op)
                L[-1] = L[-1].replace(" sc0 sc1", "")
        elif c == "z":
            A(f"    s_cmp_ge_u32 s{sCNT}, {zthr}")
            for i in range(n or 1):
                op = sq.pop(0); nq.remove(op)
                store(*op)
                st = L.pop()
                A(f"    s_cbranch_scc1 L_za{i}")
                A(st)
                A(f"    s_branch L_zb{i}")
                A(f"L_za{i}:")
                A(st.replace(" sc0 sc1", ""))
                A(f"L_zb{i}:")
        elif c == "n":
            for _ in range(n or 1): norm(*nq.pop(0))
        elif c == "t":
            for _ in range(n or 1): tally(*tq.pop(0))
        elif tok == "U":
            A(f"    s_bfe_u32 s64, s{sSLOT}, 0x2000c")
            A(f"    s_bfe_u32 s65, s{sSLOT}, 0x1000a")
            A("    s_lshl1_add_u32 s64, s64, s65")
            A(f"    s_and_b32 s66, s{sWAVE}, 1")
            A(f"    s_lshr_b32 s65, s{sWAVE}, 1")
            A("    s_lshl2_add_u32 s65, s65, s66")
            A("    s_lshl3_add_u32 s65, s65, s64")
            A("    s_lshl_b32 s65, s65, 7")
            A(f"    s_andn2_b32 s66, s{sSLOT}, 0x3fff")
            A("    s_add_u32 s66, s66, s65")
            A(f"    s_load_dword s43, s[14:15], s66 offset:{SIG:#x} glc")
        elif tok == "W":
            A(f"    s_cmp_eq_u32 s43, s{sTAG}")
            A("    s_cbranch_scc0 L_now")
            A("    v_mov_b32 v3, 1")
            A("    ds_write_b32 v30, v3 offset:192")
            A("L_now:")
        elif c == "A":
            A(f"    ; --- {UN[n]}: every wave hands {{mean, tag}}, {{M2, tag}} of this half to its twin in the partner")
            A(f"    v_mov_b32 v{vH[n]}, v8")
            A(f"    v_mov_b32 v{vH[n]+1}, v11")
            A("    v_readfirstlane_b32 s64, v8")
            A("    v_readfirstlane_b32 s66, v11")
            A(f"    s_xor_b32 s{sT}, s{sPART}, 0x400")
            if addonly:
                A(f"    s_not_b32 s{sT+1}, s{sTAG}")
                A(f"    s_sub_u32 s64, s64, s{sT+1}")
                A(f"    s_subb_u32 s65, s{sTAG}, s{sT+1}")
                A(f"    s_atomic_add_x2 s[64:65], s[14:15], s{sT} offset:{2048*(n-1)}")
                A(f"    s_sub_u32 s66, s66, s{sT+1}")
                A(f"    s_subb_u32 s67, s{sTAG}, s{sT+1}")
                A(f"    s_atomic_add_x2 s[66:67], s[14:15], s{sT} offset:{2048*(n-1)+8}")
            else:
                A(f"    s_mov_b32 s65, s{sTAG}")
                A(f"    s_mov_b32 s67, s{sTAG}")
                A(f"    s_atomic_swap_x2 s[64:65], s[14:15], s{sT} offset:{2048*(n-1)}")
                A(f"    s_atomic_swap_x2 s[66:67], s[14:15], s{sT} offset:{2048*(n-1)+8}")
        elif c == "u":
            assert not any(o[0] == 0 for o in sq + guarded)
            for _ in range(n or 1):
                k = int(lo2[len(unpacked)])
                assert (2, k) not in tq
                unpacked.add((2, k))
                for j in range(4):
                    r = D[2] + 4 * k + j
                    t = D[0] + 8 * k + 2 * j
                    A(f"    v_lshlrev_b32 v{t}, 16, v{r}")
                    A(f"    v_and_b32 v{t+1}, s{sMASK}, v{r}")
        elif c == "R": reduce(n)
        elif c == "C": combine(n)
        elif c == "F": finalize(n)
        elif c == "P": publish(n)
        elif c == "Q": poll(n); pre.add(n)
        elif c == "G": partner(n)
        elif c == "w": A(f"    s_waitcnt vmcnt({n})")
        elif c == "p": A(f"    s_setprio {n}")
        elif c == "@": stamp(n)
        else: raise ValueError(tok)
    assert not lq and not sq and not tq, (lq, sq, tq)
    if stamps:
        A("L_last:")
        A("    s_waitcnt vmcnt(0)")
        stamp(5)
        A("    s_getreg_b32 s60, hwreg(HW_REG_XCC_ID)")
        A("    s_and_b32 s60, s60, 7")
        A("    s_lshl_b32 s61, s82, 4"); A("    s_or_b32 s60, s60, s61")
        A("    s_lshl_b32 s61, s83, 12"); A("    s_or_b32 s60, s60, s61")
        A("    s_lshl_b32 s61, s84, 20"); A("    s_or_b32 s60, s60, s61")
        A("    s_waitcnt lgkmcnt(0)")
        A(f"    s_lshl_b32 s61, s2, 3"); A(f"    s_add_u32 s61, s61, s{sWAVE}"); A("    s_lshl_b32 s61, s61, 5")
        A("    v_mov_b32 v3, s61")
        for i in range(6): A(f"    v_mov_b32 v{D0+i}, s{stamp_regs[i]}")
        A(f"    v_mov_b32 v{D0+6}, s60"); A(f"    v_mov_b32 v{D0+7}, 0x5a5a5a5a")
        A("    s_mov_b64 exec, 1")
        sc = " sc0 sc1" if enc >= 0 else ""
        A(f"    global_store_dwordx4 v3, v[{D0}:{D0+3}], s[14:15]{sc}")
        A(f"    global_store_dwordx4 v3, v[{D0+4}:{D0+7}], s[14:15] offset:16{sc}")
        if enc >= 0:
            A("    s_mov_b64 exec, -1")
            A("    s_cmp_eq_u32 s2, 100")
            A("    s_cbranch_scc0 L_end")
            A(f"    s_cmp_eq_u32 s{sWAVE}, 0")
            A("    s_cbranch_scc0 L_end")
            A("L_e0:")
            A("    s_sleep 4")
            A("    s_memrealtime s[62:63]")
            A("    s_waitcnt lgkmcnt(0)")
            A("    s_sub_u32 s62, s62, s70")
            A("    s_cmp_lt_u32 s62, 2600")
            A("    s_cbranch_scc1 L_e0")
            A("    v_lshlrev_b32 v3, 5, v0")
            for i in range(32):
                A(f"    global_load_dword v{D0+2*i}, v3, s[14:15] sc1")
                A(f"    global_load_dword v{D0+2*i+1}, v3, s[14:15] offset:{4*enc} sc1")
                A("    v_add_u32 v3, 2048, v3")
                if i % 16 == 15: A("    s_waitcnt vmcnt(0)")
            A("    v_mov_b32 v4, 0x7fffffff")
            A("    v_mov_b32 v5, 0" if encs == 1 else "    v_mov_b32 v5, 0x80000000")
            for i in range(32):
                A(f"    v_subrev_u32 v6, s70, v{D0+2*i}")
                A("    v_min_i32 v4, v4, v6")
                if (encw == 1 and i >= 2) or (encw == 2 and i < 2) or not e0 <= i < e1: continue
                A(f"    v_subrev_u32 v6, s70, v{D0+2*i+1}")
                A("    v_add_u32 v5, v5, v6" if encs == 1 else "    v_max_i32 v5, v5, v6")
            A("    s_mov_b32 s64, 0x7fffffff")
            A("    s_mov_b32 s65, 0" if encs == 1 else "    s_mov_b32 s65, 0x80000000")
            for i in range(64):
                A(f"    v_readlane_b32 s66, v4, {i}")
                A(f"    v_readlane_b32 s67, v5, {i}")
                A("    s_min_i32 s64, s64, s66")
                if el0 <= i < el1: A("    s_add_u32 s65, s65, s67" if encs == 1 else "    s_max_i32 s65, s65, s67")
            if encs == 1: A(f"    s_ashr_i32 s65, s65, {esh}")
            A("    s_sub_u32 s60, s65, s64")
            A("    v_mov_b32 v3, 0")
            A("    v_mov_b32 v4, s60")
            A("    global_store_dword v3, v4, s[12:13] offset:16")
            A(f"    s_mul_i32 s60, s60, {encm}")
            A("    s_min_u32 s60, s60, 20000")
            A("    s_add_u32 s60, s60, 4000")
            A("    s_add_u32 s60, s60, s64")
            A("L_e1:")
            A("    s_sleep 1")
            A("    s_memrealtime s[62:63]")
            A("    s_waitcnt lgkmcnt(0)")
            A("    s_sub_u32 s62, s62, s70")
            A("    s_cmp_lt_u32 s62, s60")
            A("    s_cbranch_scc1 L_e1")
    else:
        A("L_last:")
    if rdiag:
        A("    s_cmp_eq_u32 s2, 0")
        A("    s_cbranch_scc0 L_end")
        A(f"    s_cmp_eq_u32 s{sWAVE}, 0")
        A("    s_cbranch_scc0 L_end")
        A("    s_getreg_b32 s60, hwreg(HW_REG_XCC_ID)")
        A("    s_and_b32 s60, s60, 7")
        A("    s_cbranch_scc0 L_end")
        A("    s_memrealtime s[70:71]")
        A("L_rw:")
        A("    s_sleep 8")
        A("    s_memrealtime s[62:63]")
        A("    s_waitcnt lgkmcnt(0)")
        A("    s_sub_u32 s62, s62, s70")
        A("    s_cmp_lt_u32 s62, 3000")
        A("    s_cbranch_scc1 L_rw")
        A("    v_mov_b32 v3, 0")
        A("    s_mov_b64 exec, 1")
        for bi, (base, off, step) in enumerate((("s[4:5]", 0x8000, 1 << 21), ("s[10:11]", 0x7000, 1 << 21), ("s[4:5]", 0x108000, 1 << 21))):
            A("    s_mov_b32 s72, 0")
            A("    s_mov_b32 s73, 0")
            A(f"    s_mov_b32 s65, {off}")
            A(f"L_rr{bi}:")
            A("    s_mov_b32 s67, 5000")
            for rep in range(3):
                A("    s_memtime s[60:61]")
                A("    s_waitcnt lgkmcnt(0)")
                A(f"    s_load_dword s64, {base}, s65 glc")
                A("    s_waitcnt lgkmcnt(0)")
                A("    s_memtime s[62:63]")
                A("    s_waitcnt lgkmcnt(0)")
                A("    s_sub_u32 s62, s62, s60")
                A("    s_min_u32 s67, s67, s62")
            A("    s_cmp_gt_u32 s67, 490")
            A("    s_cselect_b32 s66, 1, 0")
            A("    s_lshl_b32 s66, s66, s73")
            A("    s_or_b32 s72, s72, s66")
            A(f"    s_add_u32 s65, s65, {step}")
            A("    s_add_u32 s73, s73, 1")
            A("    s_cmp_lt_u32 s73, 32")
            A(f"    s_cbranch_scc1 L_rr{bi}")
            A("    s_xor_b32 s72, s72, 0xaaaaaaaa")
            A("    v_mov_b32 v4, s72")
            A(f"    global_store_dword v3, v4, s[12:13] offset:{8+4*bi}")
    if wdiag:
        A("    s_waitcnt vmcnt(0)")
        A("    s_cmp_eq_u32 s90, 0x13572468")
        A("    s_cbranch_scc0 L_wmark")
        A("    s_mov_b32 s91, 2000")
        if wdiag == 2:
            A(f"    s_bfe_u32 s92, s{sVW}, 0x1001b")
            A("    s_mul_i32 s92, s92, 2000")
            A("    s_add_u32 s91, s91, s92")
        A("    s_memrealtime s[92:93]")
        A("L_wspin:")
        A("    s_sleep 4")
        A("    s_memrealtime s[94:95]")
        A("    s_waitcnt lgkmcnt(0)")
        A("    s_sub_u32 s94, s94, s92")
        A("    s_cmp_lt_u32 s94, s91")
        A("    s_cbranch_scc1 L_wspin")
        A("L_wmark:")
        A("    s_cmp_eq_u32 s2, 255")
        A("    s_cbranch_scc0 L_end")
        A("    v_mov_b32 v3, 0")
        A("    v_mov_b32 v4, 0x13572468")
        A("    global_store_dword v3, v4, s[14:15] offset:64 sc0 sc1")
    A("L_end:")
    A("    s_endpgm")
    nv = D0 + 128
    A('.section .rodata,"a"'); A(".p2align 6"); A(f".amdhsa_kernel {NAME}")
    A(f"  .amdhsa_next_free_vgpr {nv}"); A(f"  .amdhsa_next_free_sgpr {96 if (stamps or wdiag or rdiag) else 72}"); A(f"  .amdhsa_accum_offset {nv}")
    A("  .amdhsa_group_segment_fixed_size 0"); A("  .amdhsa_kernarg_size 48"); A("  .amdhsa_user_sgpr_count 2")
    A("  .amdhsa_user_sgpr_kernarg_segment_ptr 1"); A("  .amdhsa_system_sgpr_workgroup_id_x 1")
    A("  .amdhsa_float_denorm_mode_32 3"); A(".end_amdhsa_kernel")
    return "\n".join(L) + "\n"

if __name__ == "__main__":
    p = argparse.ArgumentParser()
    p.add_argument("-o", required=True)
    for k, prm in inspect.signature(gen).parameters.items():
        p.add_argument("--" + k, type=(lambda s: int(s, 0)) if isinstance(prm.default, int) else str, default=prm.default)
    a = vars(p.parse_args())
    o = a.pop("o")
    if a["sched"] == "def": a["sched"] = DEF_SCHED
    if a["sched"] == "defs": a["sched"] = DEF_SCHED.replace("F0", "F0 @3").replace("F2", "F2 @4")
    open(o, "w").write(gen(**a))
```

```python
import argparse, struct, inspect

NAME = "standalone__instancenorm__prompt_kernel"
SLOT0 = 0x100000
SIG = 0x80000
DEF_SCHED = ("p0 YD t16 R0 OD BAR C0 F0 s Z l s2 l s t l s2 bar t2 l s2 t2 l s2 t2 l s t R1 s BAR l C1 P1 s2 l s Q1 s t G1 F1 "
             "s2 l s2 bar t s l s3 t BAR l2 bar Y t5 R2 V BAR C2 P2 G2 F2 s8")

HEADER = """; Kernarg layout for this problem (48 bytes, ptrs only, base s[0:1]):
; @launch grid=(256,1,1) block=(512,1,1) lds=256
;
;
;
"""

def f2u(x):
    return "0x%08x" % struct.unpack("<I", struct.pack("<f", x))[0]

def gen(sched=DEF_SCHED, nvwg=16, thr=3, two=1, nb=4, stamps=0, spin=200000, pf=1, dsleep=12, px=1, xtry=4, sw=0, mini=0, pad=0, force=-1, ocnt=4, omax=16, wdiag=0, rdiag=0, coh=0, b2swap=0, cfix=0, raw=0, lo1='01234567', lo2='01234567', so1='01234567', so2='01234567', far2=0, enc=-1, encm=5, encs=0, tl=0, encw=0, nowait=1, e0=0, e1=32, esh=11, el0=0, el1=64, qx=0, lay=1, ahi=0, exact=0, addonly=0, pb=0, nomax=0, oddk=-1, zthr=2, far1=0, fflip=0, pack=0, solo=0):
    L = []
    A = L.append
    UO = 16 if pack else 2048
    SG = (128 if solo == 2 else 32) if pack else SIG
    A(HEADER.rstrip())
    A('.amdgcn_target "amdgcn-amd-amdhsa--gfx950"')
    A(".text")
    if pad:
        A("; unreachable filler: puts the entry into the other 8 KiB class than the kernel descriptor, so that both dies start alike")
        A(f".p2align 8\n.fill {64*pad}, 4, 0xbf810000")
    A(f".globl {NAME}"); A(".p2align 8"); A(f".type {NAME},@function"); A(f"{NAME}:")
    sWAVE, sCH, sQ, sRB, sGB = 24, 25, 26, 28, 29
    sOFFA = [32, 33, 34, 35]; sOFFB = {1: [36, 37], 2: [38, 39]}
    sMASK, sONE, sK = 40, 41, 42
    sG, sB = 44, 46
    sVW = 48; sTAG = 49
    sPOLL = 52
    sSLOT = 56; sPART = 57
    sCNT = 58; sSKIP = 51
    sT = 60
    stamp_regs = [70, 72, 74, 76, 78, 80]
    def stamp(i):
        if stamps: A(f"    s_memrealtime s[{stamp_regs[i]}:{stamp_regs[i]+1}]")
    vOFF, vLDS, vT = 1, 2, 4
    vS = {0: 12, 1: 14, 2: 12}
    vH = {1: 16, 2: 18}
    vAC = {0: 20, 1: 24, 2: 12}
    vDUM = 28
    D0 = 32
    D = {0: D0, 1: D0 + 64, 2: D0 + 96}
    NL = {0: 16, 1: 8, 2: 8}
    UN = {0: "A", 1: "B1", 2: "B2"}
    issued = []
    stamp(0)
    A("    s_load_dwordx8 s[4:11], s[0:1], 0        ; x, g, b, out")
    A("    s_cmpk_ge_u32 s2, 256")
    A("    s_cbranch_scc1 L_end")
    A("    s_setprio 2")
    A("    v_lshrrev_b32 v2, 6, v0                  ; wave")
    A("    v_and_b32 v1, 63, v0")
    A("    v_lshlrev_b32 v1, 4, v1")
    A("    v_lshl_add_u32 v1, v2, 14, v1")
    if lay >= 2:
        A(f"    s_andn2_b32 s{sCH}, s2, 15")
        A(f"    s_and_b32 s{sT}, s2, 3")
        A(f"    s_lshl2_add_u32 s{sCH}, s{sT}, s{sCH}")
        A(f"    s_bfe_u32 s{sT}, s2, 0x20002")
        A(f"    s_add_u32 s{sCH}, s{sCH}, s{sT}")
        if ahi: A(f"    s_add_u32 s{sCH}, s{sCH}, 256")
    else:
        A(f"    s_andn2_b32 s{sCH}, s2, 7")
        if qx: A(f"    s_xor_b32 s{sCH}, s{sCH}, {qx*8}")
        A(f"    s_lshl_b32 s{sCH}, s{sCH}, 1")
        A(f"    s_and_b32 s{sT}, s2, 3")
        A(f"    s_lshl2_add_u32 s{sCH}, s{sT}, s{sCH}")
        A("    s_bitcmp1_b32 s2, 2")
        A(f"    s_addc_u32 s{sCH}, s{sCH}, 0")
    A(f"    s_lshl_b32 s{sT}, s{sCH}, 17")
    def first_loads():
        A("    v_and_b32 v3, 3, v2")
        A("    v_lshl_add_u32 v3, v3, 12, v1")
        A(f"    v_add_u32 v3, s{sT}, v3")
        if mini == 2 and nowait:
            A(f"    s_cmp_lt_u32 s2, {nvwg}")
            A(f"    s_cselect_b32 s62, s{sWAVE}, 0")
            A("    s_cmp_ge_u32 s62, 6")
            A("    s_cbranch_scc1 L_probe")
            A("    s_waitcnt lgkmcnt(0)")
            A("L_first:")
        else:
            A("    s_waitcnt lgkmcnt(0)")
        for k in range(4):
            r = D[0] + 4 * k
            A(f"    global_load_dwordx4 v[{r}:{r+3}], v3, s[4:5] offset:{1024*k} nt")
            issued.append(("L", 0, k))
        if stamps > 1: stamp(1)
    if mini == 1: first_loads()
    A("    s_load_dwordx4 s[12:15], s[0:1], 32")
    A(f"    v_readfirstlane_b32 s{sWAVE}, v2")
    if pf:
        A("    s_getpc_b64 s[30:31]")
        A("L_pc:")
        A("    v_lshlrev_b32 v4, 7, v0")
        if cfix: A("    v_mov_b32 v28, 0")
        A("    v_min_u32 v4, L_last-L_pc, v4")
        A(f"    s_cmp_lt_u32 s{sWAVE}, {pf}")
        A("    s_cbranch_scc0 L_nopf")
        A(f"    global_load_dword v{vDUM}, v4, s[30:31]")
        A("L_nopf:")
    A(f"    s_lshr_b32 s{sQ}, s{sCH}, 4")
    if lay >= 2:
        A(f"    s_mov_b32 s{sOFFA[0]}, s{sT}")
    else:
        A(f"    s_lshl_b32 s{sRB}, s{sQ}, 21")
        A(f"    s_sub_u32 s{sOFFA[0]}, s{sT}, s{sRB}")
    A(f"    s_and_b32 s{sT+2}, s{sWAVE}, 3")
    A(f"    s_lshl_b32 s{sT+2}, s{sT+2}, 12")
    A(f"    s_add_u32 s{sOFFA[0]}, s{sOFFA[0]}, s{sT+2}")
    for i in range(1, 4):
        A(f"    s_xor_b32 s{sOFFA[i]}, s{sOFFA[0]}, {4096*i:#x}")
    A("    s_mov_b32 s18, 0x4000000" if lay >= 2 else "    s_mov_b32 s18, 0x200000")
    A("    s_mov_b32 s19, 0x20000")
    if mini == 2 and not nowait:
        A(f"    s_cmp_lt_u32 s2, {nvwg}")
        A(f"    s_cselect_b32 s62, s{sWAVE}, 0")
        A("    s_cmp_ge_u32 s62, 6")
        A("    s_cbranch_scc1 L_probe")
        A("L_first:")
    if mini in (0, 2): first_loads()
    if mini < 0: A("    s_waitcnt lgkmcnt(0)")
    if lay >= 2:
        A("    s_mov_b32 s16, s4")
        A("    s_and_b32 s17, s5, 0xffff")
    else:
        A(f"    s_add_u32 s16, s4, s{sRB}")
        A("    s_addc_u32 s17, s5, 0")
        A("    s_and_b32 s17, s17, 0xffff")
    BACK = "L_first" if mini == 2 else "L_novote"
    if mini == 2:
        A("    s_branch L_novote")
        A("L_probe:")
    else:
        A(f"    s_cmp_lt_u32 s2, {nvwg}")
        A("    s_cbranch_scc0 L_novote")
    A(f"    s_cmp_eq_u32 s{sWAVE}, {sw}")
    A("    s_cbranch_scc0 L_tally")
    if pb:
        A("    s_lshr_b32 s64, s2, 2")
        A("    s_xor_b32 s64, s64, s2")
        A("    s_bfe_u32 s64, s64, 0x10001")
        A("    s_lshl_b32 s62, s2, 8")
        A("    s_or_b32 s62, s62, s64")
        A("    s_lshl_b32 s62, s62, 13")
        A("    s_add_u32 s62, s62, 0x20c0300")
    else:
        if lay >= 2:
            A("    s_lshr_b32 s64, s2, 3")
            A("    s_xor_b32 s64, s64, s2")
        else:
            A(f"    s_xor_b32 s64, s{sQ}, s2")
        A("    s_and_b32 s64, s64, 1")
        A("    s_lshl_b32 s65, s64, 13")
        A(f"    s_add_u32 s62, s{sT}, s65")
        A("    s_xor_b32 s62, s62, 0x1cf00" if lay >= 2 else "    s_xor_b32 s62, s62, 0x5d700")
    A("    s_xor_b32 s66, s62, 0x2000")
    if mini > 0: A("    s_waitcnt lgkmcnt(0)")
    A("    s_load_dword s67, s[4:5], s62 glc")
    A("    s_load_dword s68, s[4:5], s66 glc")
    if two:
        A("    s_waitcnt lgkmcnt(0)")
        A("    s_load_dword s67, s[4:5], s62 glc")
        A("    s_load_dword s68, s[4:5], s66 glc")
    A("    s_waitcnt lgkmcnt(1)")
    A("    s_getreg_b32 s69, hwreg(HW_REG_XCC_ID)")
    A("    s_lshr_b32 s65, s69, 2")
    A("    s_xor_b32 s64, s64, s65")
    A("    s_xor_b32 s64, s64, s2" if pb else f"    s_xor_b32 s64, s64, s{sQ}")
    A("    s_and_b32 s64, s64, 1")
    A("    s_cselect_b32 s65, 8, 16")
    A("    s_lshl_b32 s65, 1, s65")
    A("    s_add_u32 s65, s65, 1")
    A("    s_getreg_b32 s66, hwreg(HW_REG_IB_STS, 8, 4)")
    A("    s_cmp_eq_u32 s66, 1")
    A("    s_cselect_b32 s69, s65, 1")
    A("    s_atomic_add s69, s[12:13], 192")
    A(f"    s_branch {BACK}")
    A("L_tally:")
    if mini == 2 and nowait: A("    s_waitcnt lgkmcnt(0)")
    if mini != 2:
        A(f"    s_cmp_eq_u32 s{sWAVE}, {sw ^ 1}")
        A("    s_cbranch_scc0 L_novote")
    A(f"    s_cmp_eq_u32 s2, {nvwg-1}")
    A(f"    s_cbranch_scc0 {BACK}")
    A(f"    s_mov_b32 s63, {SLOT0:#x}")
    A("    s_mov_b32 s62, 0")
    if mini > 0 and not (mini == 2 and nowait): A("    s_waitcnt lgkmcnt(0)")
    A("    s_load_dword s63, s[14:15], s63 offset:4")
    if addonly: A("    s_load_dword s68, s[12:13], 128 glc")
    A("L_tpoll:")
    A("    s_load_dword s66, s[12:13], 192 glc")
    A("    s_add_u32 s62, s62, 1")
    A("    s_waitcnt lgkmcnt(0)")
    A("    s_bfe_u32 s64, s66, 0x80008")
    A("    s_bfe_u32 s65, s66, 0x80010")
    A("    s_absdiff_i32 s67, s64, s65")
    A(f"    s_cmp_ge_u32 s67, {thr}")
    A("    s_cbranch_scc1 L_decide")
    A("    s_and_b32 s67, s66, 0xff")
    A(f"    s_cmp_ge_u32 s67, {nvwg}")
    A("    s_cbranch_scc1 L_decide")
    A("    s_cmp_lt_u32 s62, 12")
    A("    s_cbranch_scc1 L_tpoll")
    A("L_decide:")
    A("    s_cmp_gt_u32 s64, s65")
    A("    s_cselect_b32 s65, 24, 16")
    if force >= 0: A(f"    s_mov_b32 s65, {16 + 8*force}")
    A("    s_getreg_b32 s69, hwreg(HW_REG_XCC_ID)")
    A("    s_sub_u32 s69, s69, s2")
    A("    s_and_b32 s69, s69, 7")
    A("    s_or_b32 s65, s65, s69")
    A("    s_lshl_b32 s65, s65, 24")
    A("    s_and_b32 s66, s66, 0xffffff")
    A("    s_or_b32 s64, s66, s65")
    A("    s_add_u32 s65, s63, 0x9e3779b9")
    if addonly:
        A("    s_cmp_eq_u32 s68, 0")
        A("    s_cselect_b64 s[64:65], s[64:65], 0")
        for o in (0, 64, 128):
            A(f"    s_atomic_add_x2 s[64:65], s[12:13], {o}")
    else:
        A("    s_mov_b64 s[66:67], 0")
        for o in (0, 64, 128):
            A(f"    s_atomic_cmpswap_x2 s[64:67], s[12:13], {o}")
    if mini == 2: A("    s_branch L_first")
    A("L_novote:")
    def soff(u, k):
        if u == 2 and (far2 >> k) & 1: return 50
        if u == 1 and (far1 >> k) & 1: return 50
        return sOFFA[k // 4] if u == 0 else sOFFB[u][k // 4]
    def voff(u, k):
        if not (u and (coh >> (8 * (u - 1) + k)) & 1): return 1
        page = (k // 4) ^ (b2swap if u == 2 else 0)
        return 28 if (cfix and page == 0) else 29
    def load(u, k):
        vOFF = voff(u, k)
        r = D[u] + 4 * k
        A(f"    buffer_load_dwordx4 v[{r}:{r+3}], v{vOFF}, s[16:19], s{soff(u,k)} offen offset:{(k%4)*1024} nt")
        issued.append(("L", u, k))
    normed = set(); started = set(); unpacked = set()
    def norm(u, k):
        r0 = D[u] + 4 * k
        ac = vAC[u]
        if exact == 1 and (u, k) not in unpacked:
            for j in range(4):
                A(f"    v_dot2_f32_bf16 v{4+2*j}, v{r0+j}, s30, v{ac+1}")
                A(f"    v_dot2_f32_bf16 v{5+2*j}, v{r0+j}, s31, v{ac+1}")
            for j in range(4):
                t = 4 + 2 * j
                A(f"    v_pk_fma_f32 v[{t}:{t+1}], v[{t}:{t+1}], v[{ac}:{ac+1}], v[{ac+2}:{ac+3}] op_sel_hi:[1,0,0]")
            for j in range(4):
                A(f"    v_cvt_pk_bf16_f32 v{r0+j}, v{4+2*j}, v{5+2*j}")
            normed.add((u, k))
            return
        for j in range(4):
            r = r0 + j
            if (u, k) in unpacked:
                t = D[0] + 8 * k + 2 * j
                if exact: A(f"    v_pk_add_f32 v[{t}:{t+1}], v[{t}:{t+1}], v[{ac}:{ac+1}] op_sel:[0,1] op_sel_hi:[1,1]")
                A(f"    v_pk_fma_f32 v[{t}:{t+1}], v[{t}:{t+1}], v[{ac}:{ac+1}], v[{ac+2}:{ac+3}] op_sel_hi:[1,0,0]")
                A(f"    v_cvt_pk_bf16_f32 v{r}, v{t}, v{t+1}")
                continue
            t = vT + 2 * (j & 1)
            A(f"    v_lshlrev_b32 v{t}, 16, v{r}")
            A(f"    v_and_b32 v{t+1}, s{sMASK}, v{r}")
            if exact: A(f"    v_pk_add_f32 v[{t}:{t+1}], v[{t}:{t+1}], v[{ac}:{ac+1}] op_sel:[0,1] op_sel_hi:[1,1]")
            A(f"    v_pk_fma_f32 v[{t}:{t+1}], v[{t}:{t+1}], v[{ac}:{ac+1}], v[{ac+2}:{ac+3}] op_sel_hi:[1,0,0]")
            A(f"    v_cvt_pk_bf16_f32 v{r}, v{t}, v{t+1}")
        normed.add((u, k))
    def store(u, k):
        vOFF = voff(u, k)
        if (u, k) not in normed: norm(u, k)
        r0 = D[u] + 4 * k
        A(f"    buffer_store_dwordx4 v[{r0}:{r0+3}], v{vOFF}, s[20:23], s{soff(u,k)} offen offset:{(k%4)*1024} sc0 sc1")
        issued.append(("S", u, k))
    def tally(u, k):
        i = issued.index(("L", u, k))
        A(f"    s_waitcnt vmcnt({min(63, len(issued) - 1 - i)})")
        s = vS[u]
        for j in range(4):
            r = D[u] + 4 * k + j
            if u not in started:
                started.add(u)
                A(f"    v_mov_b32 v{s}, 0")
                A(f"    v_mov_b32 v{s+1}, 0")
            A(f"    v_dot2c_f32_bf16 v{s}, s{sONE}, v{r}")
            A(f"    v_dot2c_f32_bf16 v{s+1}, v{r}, v{r}")
    def reduce(u):
        nl = NL[u] * 8
        s = vS[u]
        A("    s_nop 2")
        A(f"    v_mul_f32 v8, {f2u(1.0/nl)}, v{s}")
        A(f"    v_fma_f32 v10, -v8, v{s}, v{s+1}")
        A(f"    v_readfirstlane_b32 s{sK}, v8              ; pivot")
        A(f"    v_mov_b32 v3, s{sWAVE}")
        A("    v_lshlrev_b32 v3, 3, v3")
        A(f"    v_subrev_f32 v8, s{sK}, v8")
        A(f"    v_mul_f32 v9, {f2u(float(nl))}, v8")
        A("    v_fmac_f32 v10, v9, v8")
        for dpp in ["quad_perm:[1,0,3,2] row_mask:0xf", "quad_perm:[2,3,0,1] row_mask:0xf", "row_half_mirror row_mask:0xf",
                    "row_mirror row_mask:0xf", "row_bcast:15 row_mask:0xa", "row_bcast:31 row_mask:0xc"]:
            A("    s_nop 0")
            A(f"    v_add_f32_dpp v8, v8, v8 {dpp} bank_mask:0xf")
            A(f"    v_add_f32_dpp v10, v10, v10 {dpp} bank_mask:0xf")
        A(f"    v_mul_f32 v9, {f2u(nl/64.0)}, v8")
        A("    v_fma_f32 v11, -v9, v8, v10")
        A(f"    v_mov_b32 v10, s{sK}")
        A(f"    v_fmac_f32 v10, {f2u(1.0/64)}, v8")
        A("    s_mov_b32 exec_lo, 0")
        A("    s_brev_b32 exec_hi, 1")
        A(f"    ds_write_b64 v3, v[10:11] offset:{64*u}")
        A("    s_mov_b64 exec, -1")
    def combine(u):
        nel = NL[u] * 512
        A(f"    ds_read_b64 v[10:11], v{vLDS} offset:{64*u}")
        A("    s_waitcnt lgkmcnt(0)")
        steps = ["quad_perm:[1,0,3,2]", "quad_perm:[2,3,0,1]", "row_half_mirror"]
        for i, dpp in enumerate(steps):
            src = "v10" if i == 0 else "v8"
            if i: A("    s_nop 1")
            A(f"    v_add_f32_dpp v8, {src}, {src} {dpp} row_mask:0xf bank_mask:0xf")
        A(f"    v_mul_f32 v8, 0x3e000000, v8")
        A("    v_sub_f32 v9, v10, v8")
        A(f"    v_mul_f32 v10, {f2u(float(nel))}, v9")
        A("    v_fma_f32 v11, v10, v9, v11")
        for dpp in steps:
            A("    s_nop 1")
            A(f"    v_add_f32_dpp v11, v11, v11 {dpp} row_mask:0xf bank_mask:0xf")
    def finalize(u):
        ac = vAC[u]
        if u == 0:
            A(f"    s_and_b32 s{sT}, s{sCH}, 1")
            A(f"    s_lshl_b32 s{sT}, s{sT}, 4")
            A(f"    s_lshr_b32 s{sT+1}, s{sG}, s{sT}")
            A(f"    s_lshl_b32 s{sT+1}, s{sT+1}, 16")
            A(f"    s_lshr_b32 s{sT+2}, s{sB}, s{sT}")
            A(f"    s_lshl_b32 s{sT+2}, s{sT+2}, 16")
        elif lay == 3:
            A(f"    s_and_b32 s{sT}, s2, 8")
            A(f"    s_lshl_b32 s{sT}, s{sT}, 1")
            A(f"    s_lshr_b32 s{sT+1}, s{sG+1 if u == 1 else 50}, s{sT}")
            A(f"    s_lshl_b32 s{sT+1}, s{sT+1}, 16")
            A(f"    s_lshr_b32 s{sT+2}, s{sB+1 if u == 1 else 59}, s{sT}")
            A(f"    s_lshl_b32 s{sT+2}, s{sT+2}, 16")
        elif u == 1:
            A(f"    s_lshl_b32 s{sT+1}, s{sG+1}, 16")
            A(f"    s_lshl_b32 s{sT+2}, s{sB+1}, 16")
        else:
            A(f"    s_and_b32 s{sT+1}, s{sG+1}, s{sMASK}")
            A(f"    s_and_b32 s{sT+2}, s{sB+1}, s{sMASK}")
        A("    v_cvt_pk_bf16_f32 v9, v8, v8")
        A("    v_lshlrev_b32 v9, 16, v9                 ; mu")
        A("    v_sub_f32 v8, v8, v9")
        A("    v_mul_f32 v8, v8, v8")
        A(f"    v_fmac_f32 v8, {f2u(1.0/65536)}, v11")
        if not nomax: A("    v_max_f32 v8, 0, v8")
        A("    v_cvt_pk_bf16_f32 v8, v8, v8")
        A("    v_lshlrev_b32 v8, 16, v8")
        A(f"    v_add_f32 v8, {f2u(1e-5)}, v8")
        A("    v_cvt_pk_bf16_f32 v8, v8, v8")
        A("    v_lshlrev_b32 v8, 16, v8")
        A("    v_sqrt_f32 v8, v8")
        A("    s_nop 0")
        A("    v_cvt_pk_bf16_f32 v8, v8, v8")
        A("    v_lshlrev_b32 v8, 16, v8")
        A("    v_rcp_f32 v8, v8")
        A(f"    v_mov_b32 v{ac+2}, s{sT+2}")
        A(f"    v_mul_f32 v{ac}, s{sT+1}, v8               ; a = g/s")
        if exact: A(f"    v_xor_b32 v{ac+1}, 0x80000000, v9          ; -mu")
        else: A(f"    v_fma_f32 v{ac+2}, -v9, v{ac}, v{ac+2}         ; c = b - mu*a")
    def publish(u):
        A(f"    ; --- {UN[u]}: hand {{mean, tag, M2, tag}} of this half to the partner (one copy per reading wave, whole lines)")
        A(f"    v_mov_b32 v{vH[u]}, v8")
        A(f"    v_mov_b32 v{vH[u]+1}, v11")
        if not solo:
            A(f"    s_cmp_eq_u32 s{sWAVE}, 0")
            A(f"    s_cbranch_scc0 L_nopub{u}")
        A(f"    v_mov_b32 v9, s{sTAG}")
        A("    v_mov_b32 v10, v11")
        A(f"    v_mov_b32 v11, s{sTAG}")
        if pack:
            A(f"    v_lshl_add_u32 v3, v0, 7, s{sSLOT}")
            A("    s_mov_b64 exec, 1" if solo else "    s_mov_b64 exec, 0xff")
            A(f"    global_store_dwordx4 v3, v[8:11], s[14:15] offset:{UO*(u-1)} sc0 sc1")
            A("    s_mov_b64 exec, -1")
            A("    s_nop 0")
        else:
            A(f"    v_lshl_add_u32 v3, v0, 4, s{sSLOT}")
            A(f"    global_store_dwordx4 v3, v[8:11], s[14:15] offset:{UO*(u-1)} sc0 sc1")
            A("    s_nop 1")
        A(f"L_nopub{u}:")
    pre = set()
    def poll(u):
        A(f"    s_load_dwordx4 s[{sPOLL}:{sPOLL+3}], s[14:15], s{sPART} offset:{UO*(u-1)} glc")
    def partner(u):
        A(f"    ; --- {UN[u]}: wait for the partner's half and merge")
        A(f"    s_mov_b32 s{sCNT}, 0")
        if u in pre: A(f"    s_branch L_chk{u}")
        A(f"L_poll{u}:")
        poll(u)
        A(f"    s_add_u32 s{sCNT}, s{sCNT}, 1")
        A(f"    s_cmp_lt_u32 s{sCNT}, {spin}")
        A("    s_cbranch_scc0 L_end")
        A(f"L_chk{u}:")
        A("    s_waitcnt lgkmcnt(0)")
        A(f"    s_xor_b32 s{sT}, s{sPOLL+1}, s{sTAG}")
        A(f"    s_xor_b32 s{sT+1}, s{sPOLL+3}, s{sTAG}")
        A(f"    s_or_b32 s{sT}, s{sT}, s{sT+1}")
        A(f"    s_cbranch_scc1 L_poll{u}")
        if stamps: A(f"    s_mov_b32 s{82+u}, s{sCNT}")
        A(f"    v_add_f32 v8, s{sPOLL}, v{vH[u]}")
        A(f"    v_subrev_f32 v9, s{sPOLL}, v{vH[u]}")
        A(f"    v_add_f32 v11, s{sPOLL+2}, v{vH[u]+1}")
        A("    v_mul_f32 v8, 0.5, v8")
        A(f"    v_mul_f32 v10, {f2u(16384.0)}, v9")
        A("    v_fmac_f32 v11, v10, v9")
    ndec = [0]
    def decision():
        n = ndec[0]; ndec[0] += 1
        A(f"    s_mov_b32 s{sCNT}, 0")
        A(f"L_dtry{n}:")
        A(f"    s_lshl_b32 s{sT}, s{sCNT}, 6")
        A(f"    s_load_dwordx2 s[{sVW}:{sVW+1}], s[12:13], s{sT}")
        A(f"L_dchk{n}:")
        A("    s_waitcnt lgkmcnt(0)")
        A(f"    s_cmp_lg_u32 s{sVW}, 0")
        A(f"    s_cbranch_scc1 L_dgot{n}")
        A(f"    s_add_u32 s{sCNT}, s{sCNT}, 1")
        A(f"    s_sleep {dsleep}")
        A(f"    s_cmp_lt_u32 s{sCNT}, 3")
        A(f"    s_cbranch_scc1 L_dtry{n}")
        A(f"    s_cmp_lt_u32 s{sCNT}, {spin}")
        A("    s_cbranch_scc0 L_end")
        A("    v_mov_b32 v3, 0")
        A(f"    global_load_dwordx2 v[{vT}:{vT+1}], v3, s[12:13] sc1")
        A("    s_waitcnt vmcnt(0)")
        A(f"    v_readfirstlane_b32 s{sVW}, v{vT}")
        A(f"    v_readfirstlane_b32 s{sVW+1}, v{vT+1}")
        A(f"    s_branch L_dchk{n}")
        A(f"L_dgot{n}:")
        if stamps: A(f"    s_mov_b32 s82, s{sCNT}")
        A(f"    s_lshr_b32 s{sT}, s{sVW}, 24")
        A(f"    s_add_u32 s{sT+1}, s{sT}, s2")
        if oddk >= 0: A(f"    s_and_b32 s27, s{sT+1}, 1")
        A(f"    s_bfe_u32 s{sT+2}, s{sT+1}, 0x10002        ; member = y >> 2")
        if px == 1:
            A(f"    s_xor_b32 s{sT+1}, s{sT+1}, s{sT+2}")
        elif px:
            A(f"    s_mul_i32 s{sT+3}, s{sT+2}, {px}")
            A(f"    s_xor_b32 s{sT+1}, s{sT+1}, s{sT+3}")
        A(f"    s_and_b32 s{sT+1}, s{sT+1}, 3              ; pair")
        A(f"    s_lshr_b32 s{sT}, s{sT}, 3")
        A(f"    s_xor_b32 s{sT}, s{sT}, s{sT+2}")
        if lay == 3:
            A("    s_lshr_b32 s64, s2, 5")
            A(f"    s_xor_b32 s{sT}, s{sT}, s64")
        else:
            A(f"    s_xor_b32 s{sT}, s{sT}, s{sQ}")
        A(f"    s_and_b32 s{sT}, s{sT}, 1")
        if raw:
            A("    s_load_dword s64, s[12:13], 244")
            A("    s_waitcnt lgkmcnt(0)")
            A(f"    s_lshr_b32 s65, s{sVW}, 27")
            A("    s_xor_b32 s64, s64, s65")
            if raw == 1: A("    s_xor_b32 s64, s64, 1")
            A("    s_and_b32 s64, s64, 1")
            A(f"    s_lshl1_add_u32 s{sT}, s{sT}, s64")
            A(f"    s_and_b32 s{sT+3}, s{sWAVE}, 1")
        else:
            A(f"    s_and_b32 s{sT+3}, s{sWAVE}, 1")
            A(f"    s_lshl1_add_u32 s{sT}, s{sT}, s{sT+3}")
        if cfix:
            A("    ; lane layouts whose four 256 B pieces (32 KiB apart) share a memory channel in out, one per page of the wave")
            A(f"    s_lshl2_add_u32 s64, s{sT+3}, s{sT}")
            A("    s_lshr_b32 s65, s10, 12")
            A("    s_xor_b32 s66, s64, 1")
            A("    s_add_u32 s64, s64, s65")
            A("    s_add_u32 s66, s66, s65")
            A("    s_lshr_b32 s64, s64, 3")
            A("    s_lshr_b32 s66, s66, 3")
            A("    v_bfe_u32 v4, v0, 4, 2")
            A("    v_and_b32 v5, 15, v0")
            A("    v_lshlrev_b32 v5, 4, v5")
            A("    v_lshl_add_u32 v5, v4, 15, v5")
            A(f"    v_lshl_add_u32 v5, s{sT+3}, 14, v5")
            A("    v_lshrrev_b32 v6, 7, v0")
            for vr, sr in ((28, 64), (29, 66)):
                A(f"    v_add_u32 v7, s{sr}, v4")
                A("    v_xor_b32 v7, v7, v6")
                A("    v_and_b32 v7, 3, v7")
                A(f"    v_lshl_add_u32 v{vr}, v7, 8, v5")
        A(f"    s_lshl_b32 s{sT}, s{sT}, 12")
        A(f"    s_lshl_b32 s{sT+3}, s{sT+1}, 19")
        A(f"    s_add_u32 s{sT}, s{sT}, s{sT+3}")
        if lay == 3:
            A("    s_lshr_b32 s64, s2, 5")
            A(f"    s_bfe_u32 s{sT+3}, s2, 0x20003")
            A(f"    s_lshl4_add_u32 s{sT+3}, s64, s{sT+3}")
            A(f"    s_add_u32 s{sT+3}, s{sT+3}, 0x100")
            A(f"    s_lshl_b32 s64, s{sT+3}, 17")
            A(f"    s_add_u32 s{sOFFB[1][0]}, s{sT}, s64")
            A(f"    s_xor_b32 s{sOFFB[1][1]}, s{sOFFB[1][0]}, 0x1000")
            A(f"    s_xor_b32 s{sOFFB[2][b2swap]}, s{sOFFB[1][0]}, 0x1000000")
            A(f"    s_xor_b32 s{sOFFB[2][1-b2swap]}, s{sOFFB[1][0]}, 0x1001000")
            A(f"    s_lshl2_add_u32 s{sT}, s{sT+1}, s{sT+3}")
            A(f"    s_andn2_b32 s{sT}, s{sT}, 1")
            A(f"    s_lshl_b32 s{sT}, s{sT}, 1")
            A(f"    s_load_dword s{sG+1}, s[6:7], s{sT}")
            A(f"    s_load_dword s{sB+1}, s[8:9], s{sT}")
            A(f"    s_load_dword s50, s[6:7], s{sT} offset:256")
            A(f"    s_load_dword s59, s[8:9], s{sT} offset:256")
            A(f"    s_lshr_b32 s{sT+3}, s2, 3")
            A(f"    s_lshl2_add_u32 s{sT+1}, s{sT+3}, s{sT+1}")
        elif lay >= 2:
            A(f"    s_and_b32 s{sT+3}, s{sCH}, 0x1f2")
            A(f"    s_xor_b32 s{sT+3}, s{sT+3}, 0x100")
            A(f"    s_lshl_b32 s64, s{sT+3}, 17")
            A(f"    s_add_u32 s{sOFFB[1][0]}, s{sT}, s64")
            A(f"    s_xor_b32 s{sOFFB[1][1]}, s{sOFFB[1][0]}, 0x1000")
            A(f"    s_xor_b32 s{sOFFB[2][b2swap]}, s{sOFFB[1][0]}, 0x20000")
            A(f"    s_xor_b32 s{sOFFB[2][1-b2swap]}, s{sOFFB[1][0]}, 0x21000")
            if far1:
                A(f"    s_lshr_b32 s65, s{sVW}, 27")
                A("    s_xor_b32 s64, s43, s65")
                A(f"    s_xor_b32 s64, s64, s{sWAVE}")
                if fflip: A("    s_xor_b32 s64, s64, 1")
                A("    s_and_b32 s64, s64, 1")
                A("    s_lshl_b32 s64, s64, 13")
                A(f"    s_xor_b32 s50, s{sOFFB[1][0]}, s64")
            A(f"    s_lshl2_add_u32 s{sT}, s{sT+1}, s{sT+3}")
            A(f"    s_lshl_b32 s{sT}, s{sT}, 1")
            A(f"    s_load_dword s{sG+1}, s[6:7], s{sT}")
            A(f"    s_load_dword s{sB+1}, s[8:9], s{sT}")
            A(f"    s_lshr_b32 s{sT+3}, s2, 3")
            A(f"    s_lshl2_add_u32 s{sT+1}, s{sT+3}, s{sT+1}")
        else:
            A(f"    s_xor_b32 s{sOFFB[1][0]}, s{sT}, 0x40000")
            A(f"    s_xor_b32 s{sOFFB[1][1]}, s{sT}, 0x41000")
            A(f"    s_xor_b32 s{sOFFB[2][b2swap]}, s{sT}, 0x60000")
            A(f"    s_xor_b32 s{sOFFB[2][1-b2swap]}, s{sT}, 0x61000")
            if far2: A(f"    s_xor_b32 s50, s{sOFFB[2][0]}, 0x2000")
            A(f"    s_lshl2_add_u32 s{sT+1}, s{sQ}, s{sT+1}")
            A(f"    s_lshl_b32 s{sT}, s{sT+1}, 3")
            A(f"    s_load_dword s{sG+1}, s[6:7], s{sT} offset:4")
            A(f"    s_load_dword s{sB+1}, s[8:9], s{sT} offset:4")
        A(f"    s_lshl2_add_u32 s{sSLOT}, s{sT+1}, s{sT+2}")
        A(f"    s_lshl_b32 s{sSLOT}, s{sSLOT}, 10")
        A(f"    s_add_u32 s{sSLOT}, s{sSLOT}, {SLOT0:#x}")
        A(f"    s_xor_b32 s{sPART}, s{sSLOT}, 0x400")
        if not solo:
            A(f"    s_lshl_b32 s{sT+3}, s{sWAVE}, 7")
            A(f"    s_add_u32 s{sPART}, s{sPART}, s{sT+3}")
        stamp(2)
    for k in range(0 if mini < 0 else 4, 16):
        load(0, k)
        if k == (3 if mini < 0 else 7):
            A(f"    s_andn2_b32 s{sT+1}, s{sCH}, 1")
            A(f"    s_lshl_b32 s{sT+1}, s{sT+1}, 1")
            A(f"    s_load_dword s{sG}, s[6:7], s{sT+1}")
            A(f"    s_load_dword s{sB}, s[8:9], s{sT+1}")
            if lay >= 2:
                A("    s_mov_b32 s20, s10")
                A("    s_and_b32 s21, s11, 0xffff")
                A("    s_mov_b32 s22, 0x4000000")
            else:
                A(f"    s_add_u32 s20, s10, s{sRB}")
                A("    s_addc_u32 s21, s11, 0")
                A("    s_and_b32 s21, s21, 0xffff")
                A("    s_mov_b32 s22, 0x200000")
            A("    s_mov_b32 s23, 0x20000")
            A(f"    s_mov_b32 s{sMASK}, 0xffff0000")
            A(f"    s_mov_b32 s{sONE}, 0x3f803f80")
            if exact == 1:
                A("    s_movk_i32 s30, 0x3f80")
                A("    s_mov_b32 s31, 1.0")
            A(f"    s_mov_b64 s[{sSLOT}:{sSLOT+1}], 0")
            if tl & 1: A(f"    s_load_dword s68, s[10:11], s{sT}")
            if far1: A("    s_load_dword s43, s[14:15], 0xF0004")
            if tl & 12: A(f"    s_xor_b32 s{sT+2}, s{sT}, 0x2000000")
            if tl & 4: A(f"    s_load_dword s43, s[4:5], s{sT+2}")
            if tl & 8: A(f"    s_load_dword s59, s[10:11], s{sT+2}")
            if tl & 2: A(f"    s_load_dword s69, s[14:15], 0xc0000")
            if coh and cfix:
                A("    v_mov_b32 v29, 0")
            elif coh:
                A("    v_and_b32 v29, 15, v0")
                A("    v_bfe_u32 v4, v0, 4, 2")
                A("    v_lshlrev_b32 v29, 4, v29")
                A("    v_lshl_add_u32 v29, v4, 15, v29")
                A("    v_lshrrev_b32 v5, 1, v2")
                A("    v_xor_b32 v4, v4, v5")
                A("    v_lshl_add_u32 v29, v4, 8, v29")
                A("    v_and_b32 v4, 1, v2")
                A("    v_lshl_add_u32 v29, v4, 14, v29")
            if wdiag: A("    s_load_dword s90, s[14:15], 0x40")
            A("    v_and_b32 v2, 7, v0")
            A("    v_lshlrev_b32 v2, 3, v2")
            if " o " in sched:
                A("    v_mov_b32 v30, 0")
                A("    v_mov_b32 v31, 0")
                A("    ds_write_b64 v30, v[30:31] offset:192")
                if solo: A("    ds_write2_b32 v30, v30, v30 offset0:55 offset1:59")
                A(f"    s_mov_b32 s{sSKIP}, 99")
    if mini == 1: A("    s_waitcnt lgkmcnt(0)")
    if stamps == 1: stamp(1)
    lq = [(1, int(k)) for k in lo1] + [(2, int(k)) for k in lo2]
    tq = [(0, k) for k in range(16)] + lq
    sq = [(0, k) for k in range(16)] + [(1, int(k)) for k in so1] + [(2, int(k)) for k in so2]
    nq = list(sq)
    first = []; guarded = []
    for tok in sched.split():
        c, arg = tok[0], tok[1:]
        n = int(arg) if arg.isdigit() else None
        if tok == "YD":
            first.extend(lq.pop(0) for _ in range(nb))
            A(f"    s_cmp_lt_u32 s{sWAVE}, 4")
            A("    s_cbranch_scc1 L_skipY")
            decision()
            for op in first: load(*op)
            A("    s_branch L_joinY")
            A("L_skipY:")
            A("    s_waitcnt vmcnt(0)")
            A("L_joinY:")
        elif tok == "OD":
            A(f"    s_cmp_lt_u32 s{sWAVE}, 4")
            A("    s_cbranch_scc0 L_skipO")
            decision()
            keep = len(issued)
            for op in first: load(*op)
            del issued[keep:]
            A("L_skipO:")
        elif tok == "BAR":
            A("    s_waitcnt lgkmcnt(0)")
            A("    s_barrier")
        elif tok == "bar": A("    s_barrier")
        elif tok == "Z":
            A("    ; --- fill the own slot with ~tag: known base for the adds below, and early polls are served by the memory-side cache")
            A(f"    s_cmp_eq_u32 s{sWAVE}, 0")
            A("    s_cbranch_scc0 L_noz")
            A(f"    v_lshl_add_u32 v3, v0, 4, s{sSLOT}")
            A(f"    s_not_b32 s{sT}, s{sTAG}")
            for i in range(4): A(f"    v_mov_b32 v{vT+i}, s{sT}")
            if solo: A(f"    s_mov_b64 exec, {0xff if solo == 1 else 0xffff}")
            if pack == 2:
                A("    s_mov_b32 exec_lo, 0x0f0f0f0f")
                A("    s_mov_b32 exec_hi, 0x0f0f0f0f")
            A(f"    global_store_dwordx4 v3, v[{vT}:{vT+3}], s[14:15] sc0 sc1")
            if pack == 2 or solo: A("    s_mov_b64 exec, -1")
            if not pack:
                A(f"    global_store_dwordx4 v3, v[{vT}:{vT+3}], s[14:15] offset:2048 sc0 sc1")
                A(f"    v_add_u32 v3, {SIG:#x}, v3")
                A(f"    global_store_dwordx4 v3, v[{vT}:{vT+3}], s[14:15] sc0 sc1")
            A("    s_nop 1")
            A("L_noz:")
        elif tok == "Y":
            A("    ; --- flag: every load of this workgroup has been issued")
            A(f"    s_cmp_eq_u32 s{sWAVE}, 7")
            A("    s_cbranch_scc0 L_noy")
            if pack:
                A("    v_and_b32 v3, 63, v0")
                A(f"    v_lshl_add_u32 v3, v3, 7, s{sSLOT}")
                A(f"    v_mov_b32 v{vT}, s{sTAG}")
                A("    s_mov_b64 exec, 1" if solo else "    s_mov_b64 exec, 0xff")
                A(f"    global_store_dword v3, v{vT}, s[14:15] offset:{SG} sc0 sc1")
                A("    s_mov_b64 exec, -1")
            else:
                A(f"    s_add_u32 s{sT}, s{sSLOT}, {SIG - 7*1024:#x}")
                A(f"    v_lshl_add_u32 v3, v0, 4, s{sT}")
                for i in range(4): A(f"    v_mov_b32 v{vT+i}, s{sTAG}")
                A(f"    global_store_dwordx4 v3, v[{vT}:{vT+3}], s[14:15] sc0 sc1")
                A("    s_nop 1")
            A("L_noy:")
        elif tok == "V":
            A("    ; --- DRAM reads starve behind a burst of writes: before the last stores, give the other workgroups of the")
            A(f"    s_and_b32 s{sT+3}, s{sWAVE}, 1")
            A(f"    s_lshr_b32 s{sT+2}, s{sWAVE}, 1")
            A(f"    s_lshl2_add_u32 s{sT+2}, s{sT+2}, s{sT+3}")
            A(f"    s_lshl_b32 s{sT+2}, s{sT+2}, 10")
            A(f"    s_andn2_b32 s{sT+3}, s{sSLOT}, 0x3fff")
            A(f"    s_add_u32 s{sT+2}, s{sT+2}, s{sT+3}")
            A(f"    s_mov_b32 s{sCNT}, 0")
            A("L_v:")
            A(f"    s_load_dword s{sT}, s[14:15], s{sT+2} offset:{SG:#x}")
            A(f"    s_add_u32 s{sT+2}, s{sT+2}, 128")
            A(f"    s_add_u32 s{sCNT}, s{sCNT}, 1")
            A("    s_waitcnt lgkmcnt(0)")
            A(f"    s_cmp_eq_u32 s{sT}, s{sTAG}")
            A("    s_cbranch_scc1 L_vd")
            A(f"    s_cmp_lt_u32 s{sCNT}, {xtry}")
            A("    s_cbranch_scc1 L_v")
            A("L_vd:")
        elif c == "g":
            for _ in range(n or 1):
                op = sq.pop(0); nq.remove(op)
                k = len(guarded); guarded.append(op)
                if k == 0:
                    A("    ; --- a workgroup that has fallen behind (hurry flag) puts the rest of these stores off and gets its last loads out")
                    A("    ds_read_b32 v31, v30 offset:192")
                else:
                    A(f"    s_cmp_lt_u32 s{sSKIP}, 99")
                    A(f"    s_cbranch_scc1 L_gs{k}")
                A("    s_waitcnt lgkmcnt(0)")
                A(f"    v_readfirstlane_b32 s{sT}, v31")
                if k == oddk: A(f"    s_or_b32 s{sT}, s{sT}, s27")
                else: A(f"    s_cmp_lg_u32 s{sT}, 0")
                A(f"    s_cselect_b32 s{sSKIP}, {k}, 99")
                A(f"    s_cbranch_scc1 L_gs{k}")
                A("    ds_read_b32 v31, v30 offset:192")
                keep = len(issued)
                store(*op)
                del issued[keep:]
                normed.discard(op)
                A(f"L_gs{k}:")
        elif tok == "e":
            A("    ; --- the stores that were put off")
            A(f"    s_cmp_lt_u32 s{sSKIP}, 99")
            A("    s_cbranch_scc0 L_edone")
            for k, op in enumerate(guarded):
                if k < len(guarded) - 1:
                    A(f"    s_cmp_le_u32 s{sSKIP}, {k}")
                    A(f"    s_cbranch_scc0 L_es{k}")
                keep = len(issued)
                store(*op)
                del issued[keep:]
                A(f"L_es{k}:")
            A("L_edone:")
        elif tok == "o":
            A("    ; --- DRAM reads starve behind a burst of writes, so all workgroups should get their last loads out together:")
            A("    v_mov_b32 v3, 1")
            A(f"    s_cmp_lt_u32 s{sWAVE}, 4")
            A("    s_cbranch_scc1 L_owatch")
            A("    s_mov_b64 exec, 1")
            A("    ds_add_u32 v30, v3 offset:196")
            A("    s_mov_b64 exec, -1")
            A("    s_branch L_odone")
            A("L_owatch:")
            A(f"    s_bfe_u32 s64, s{sSLOT}, 0x2000c")
            A(f"    s_bfe_u32 s65, s{sSLOT}, 0x1000a")
            A("    s_lshl1_add_u32 s64, s64, s65")
            A(f"    s_lshl1_add_u32 s65, s{sWAVE}, s64")
            A("    s_add_u32 s65, s65, 1")
            A("    s_and_b32 s66, s65, 1")
            A("    s_bfe_u32 s65, s65, 0x20001")
            A("    s_lshl2_add_u32 s65, s65, s66")
            if solo:
                A("    s_lshl_b32 s65, s65, 10")
            else:
                A("    s_lshl3_add_u32 s65, s65, s64")
                A("    s_lshl_b32 s65, s65, 7")
            A(f"    s_andn2_b32 s66, s{sSLOT}, 0x3fff")
            A("    s_add_u32 s66, s66, s65")
            A(f"    s_mov_b32 s{sCNT}, 0")
            A("L_oloop:")
            A(f"    s_load_dword s{sT}, s[14:15], s66 offset:{SG:#x} glc")
            A(f"    s_add_u32 s{sCNT}, s{sCNT}, 1")
            A("    s_waitcnt lgkmcnt(0)")
            A(f"    s_cmp_eq_u32 s{sT}, s{sTAG}")
            A("    s_cbranch_scc1 L_ohit")
            A("    ds_read_b64 v[4:5], v30 offset:192")
            A("    s_waitcnt lgkmcnt(0)")
            A("    v_lshl_add_u32 v4, v4, 2, v5")
            A(f"    s_cmp_ge_u32 s{sCNT}, {omax}")
            A(f"    v_readfirstlane_b32 s{sT}, v4")
            A("    s_cbranch_scc1 L_odone")
            A(f"    s_cmp_lt_u32 s{sT}, {ocnt}")
            A("    s_cbranch_scc1 L_oloop")
            A("    s_branch L_odone")
            A("L_ohit:")
            A("    ds_write_b32 v30, v3 offset:192")
            A("L_odone:")
        elif c == "l":
            for _ in range(n or 1): load(*lq.pop(0))
        elif c == "s":
            for _ in range(n or 1):
                op = sq.pop(0)
                if op in nq: nq.remove(op)
                store(*op)
        elif c == "y":
            for _ in range(n or 1):
                op = sq.pop(0); nq.remove(op)
                store(*op)
                L[-1] = L[-1].replace(" sc0 sc1", "")
        elif c == "z":
            A(f"    s_cmp_ge_u32 s{sCNT}, {zthr}")
            for i in range(n or 1):
                op = sq.pop(0); nq.remove(op)
                store(*op)
                st = L.pop()
                A(f"    s_cbranch_scc1 L_za{i}")
                A(st)
                A(f"    s_branch L_zb{i}")
                A(f"L_za{i}:")
                A(st.replace(" sc0 sc1", ""))
                A(f"L_zb{i}:")
        elif c == "n":
            for _ in range(n or 1): norm(*nq.pop(0))
        elif c == "t":
            for _ in range(n or 1): tally(*tq.pop(0))
        elif tok == "U":
            A(f"    s_bfe_u32 s64, s{sSLOT}, 0x2000c")
            A(f"    s_bfe_u32 s65, s{sSLOT}, 0x1000a")
            A("    s_lshl1_add_u32 s64, s64, s65")
            A(f"    s_and_b32 s66, s{sWAVE}, 1")
            A(f"    s_lshr_b32 s65, s{sWAVE}, 1")
            A("    s_lshl2_add_u32 s65, s65, s66")
            A("    s_lshl3_add_u32 s65, s65, s64")
            A("    s_lshl_b32 s65, s65, 7")
            A(f"    s_andn2_b32 s66, s{sSLOT}, 0x3fff")
            A("    s_add_u32 s66, s66, s65")
            A(f"    s_load_dword s43, s[14:15], s66 offset:{SG:#x} glc")
        elif tok == "W":
            A(f"    s_cmp_eq_u32 s43, s{sTAG}")
            A("    s_cbranch_scc0 L_now")
            A("    v_mov_b32 v3, 1")
            A("    ds_write_b32 v30, v3 offset:192")
            A("L_now:")
        elif c == "A":
            A(f"    ; --- {UN[n]}: hand {{mean, tag}}, {{M2, tag}} of this half to the partner" if solo else f"    ; --- {UN[n]}: every wave hands {{mean, tag}}, {{M2, tag}} of this half to its twin in the partner")
            A(f"    v_mov_b32 v{vH[n]}, v8")
            A(f"    v_mov_b32 v{vH[n]+1}, v11")
            A("    v_readfirstlane_b32 s64, v8")
            A("    v_readfirstlane_b32 s66, v11")
            A(f"    s_mov_b32 s{sT}, s{sSLOT}" if solo else f"    s_xor_b32 s{sT}, s{sPART}, 0x400")
            if addonly:
                A(f"    s_not_b32 s{sT+1}, s{sTAG}")
                A(f"    s_sub_u32 s64, s64, s{sT+1}")
                A(f"    s_subb_u32 s65, s{sTAG}, s{sT+1}")
                A(f"    s_atomic_add_x2 s[64:65], s[14:15], s{sT} offset:{UO*(n-1)}")
                A(f"    s_sub_u32 s66, s66, s{sT+1}")
                A(f"    s_subb_u32 s67, s{sTAG}, s{sT+1}")
                A(f"    s_atomic_add_x2 s[66:67], s[14:15], s{sT} offset:{UO*(n-1)+8}")
                if solo: A(f"L_nopub{n}:")
            else:
                A(f"    s_mov_b32 s65, s{sTAG}")
                A(f"    s_mov_b32 s67, s{sTAG}")
                A(f"    s_atomic_swap_x2 s[64:65], s[14:15], s{sT} offset:{UO*(n-1)}")
                A(f"    s_atomic_swap_x2 s[66:67], s[14:15], s{sT} offset:{UO*(n-1)+8}")
        elif c == "u":
            assert not any(o[0] == 0 for o in sq + guarded)
            for _ in range(n or 1):
                k = int(lo2[len(unpacked)])
                assert (2, k) not in tq
                unpacked.add((2, k))
                for j in range(4):
                    r = D[2] + 4 * k + j
                    t = D[0] + 8 * k + 2 * j
                    A(f"    v_lshlrev_b32 v{t}, 16, v{r}")
                    A(f"    v_and_b32 v{t+1}, s{sMASK}, v{r}")
        elif c == "R": reduce(n)
        elif c == "C":
            if solo and n:
                A(f"    s_cmp_eq_u32 s{sWAVE}, 0")
                A(f"    s_cbranch_scc0 L_nopub{n}")
            combine(n)
        elif c == "F":
            finalize(n)
            if solo and n:
                ac = vAC[n]
                A(f"    v_mov_b32 v{ac+3}, 1")
                A("    s_mov_b64 exec, 1")
                A(f"    ds_write_b128 v30, v[{ac}:{ac+3}] offset:{192 + 16*n}")
                A("    s_mov_b64 exec, -1")
                A(f"    s_branch L_bc{n}")
                A(f"L_get{n}:                                    ; the other waves take {{a, -mu, b, ready}} from LDS")
                A(f"    s_mov_b32 s{sCNT}, 0")
                A(f"L_spin{n}:")
                A(f"    ds_read_b128 v[{ac}:{ac+3}], v30 offset:{192 + 16*n}")
                A(f"    s_add_u32 s{sCNT}, s{sCNT}, 1")
                A(f"    s_cmp_lt_u32 s{sCNT}, {spin*8}")
                A("    s_cbranch_scc0 L_end")
                A("    s_waitcnt lgkmcnt(0)")
                A(f"    v_cmp_eq_u32 vcc, 0, v{ac+3}")
                A("    s_and_b64 vcc, exec, vcc")
                A(f"    s_cbranch_vccnz L_spin{n}")
                A(f"L_bc{n}:")
        elif c == "P": publish(n)
        elif c == "Q":
            if solo:
                A(f"    s_cmp_eq_u32 s{sWAVE}, 0")
                A(f"    s_cbranch_scc0 L_noq{n}")
            poll(n); pre.add(n)
            if solo: A(f"L_noq{n}:")
        elif c == "G":
            if solo:
                A(f"    s_cmp_eq_u32 s{sWAVE}, 0")
                A(f"    s_cbranch_scc0 L_get{n}")
            partner(n)
        elif c == "w": A(f"    s_waitcnt vmcnt({n})")
        elif c == "p": A(f"    s_setprio {n}")
        elif c == "@": stamp(n)
        else: raise ValueError(tok)
    assert not lq and not sq and not tq, (lq, sq, tq)
    if stamps:
        A("L_last:")
        A("    s_waitcnt vmcnt(0)")
        stamp(5)
        A("    s_getreg_b32 s60, hwreg(HW_REG_XCC_ID)")
        A("    s_and_b32 s60, s60, 7")
        A("    s_lshl_b32 s61, s82, 4"); A("    s_or_b32 s60, s60, s61")
        A("    s_lshl_b32 s61, s83, 12"); A("    s_or_b32 s60, s60, s61")
        A("    s_lshl_b32 s61, s84, 20"); A("    s_or_b32 s60, s60, s61")
        A("    s_waitcnt lgkmcnt(0)")
        A(f"    s_lshl_b32 s61, s2, 3"); A(f"    s_add_u32 s61, s61, s{sWAVE}"); A("    s_lshl_b32 s61, s61, 5")
        A("    v_mov_b32 v3, s61")
        for i in range(6): A(f"    v_mov_b32 v{D0+i}, s{stamp_regs[i]}")
        A(f"    v_mov_b32 v{D0+6}, s60"); A(f"    v_mov_b32 v{D0+7}, 0x5a5a5a5a")
        A("    s_mov_b64 exec, 1")
        sc = " sc0 sc1" if enc >= 0 else ""
        A(f"    global_store_dwordx4 v3, v[{D0}:{D0+3}], s[14:15]{sc}")
        A(f"    global_store_dwordx4 v3, v[{D0+4}:{D0+7}], s[14:15] offset:16{sc}")
        if enc >= 0:
            A("    s_mov_b64 exec, -1")
            A("    s_cmp_eq_u32 s2, 100")
            A("    s_cbranch_scc0 L_end")
            A(f"    s_cmp_eq_u32 s{sWAVE}, 0")
            A("    s_cbranch_scc0 L_end")
            A("L_e0:")
            A("    s_sleep 4")
            A("    s_memrealtime s[62:63]")
            A("    s_waitcnt lgkmcnt(0)")
            A("    s_sub_u32 s62, s62, s70")
            A("    s_cmp_lt_u32 s62, 2600")
            A("    s_cbranch_scc1 L_e0")
            A("    v_lshlrev_b32 v3, 5, v0")
            for i in range(32):
                A(f"    global_load_dword v{D0+2*i}, v3, s[14:15] sc1")
                A(f"    global_load_dword v{D0+2*i+1}, v3, s[14:15] offset:{4*enc} sc1")
                A("    v_add_u32 v3, 2048, v3")
                if i % 16 == 15: A("    s_waitcnt vmcnt(0)")
            A("    v_mov_b32 v4, 0x7fffffff")
            A("    v_mov_b32 v5, 0" if encs == 1 else "    v_mov_b32 v5, 0x80000000")
            for i in range(32):
                A(f"    v_subrev_u32 v6, s70, v{D0+2*i}")
                A("    v_min_i32 v4, v4, v6")
                if (encw == 1 and i >= 2) or (encw == 2 and i < 2) or not e0 <= i < e1: continue
                A(f"    v_subrev_u32 v6, s70, v{D0+2*i+1}")
                A("    v_add_u32 v5, v5, v6" if encs == 1 else "    v_max_i32 v5, v5, v6")
            A("    s_mov_b32 s64, 0x7fffffff")
            A("    s_mov_b32 s65, 0" if encs == 1 else "    s_mov_b32 s65, 0x80000000")
            for i in range(64):
                A(f"    v_readlane_b32 s66, v4, {i}")
                A(f"    v_readlane_b32 s67, v5, {i}")
                A("    s_min_i32 s64, s64, s66")
                if el0 <= i < el1: A("    s_add_u32 s65, s65, s67" if encs == 1 else "    s_max_i32 s65, s65, s67")
            if encs == 1: A(f"    s_ashr_i32 s65, s65, {esh}")
            A("    s_sub_u32 s60, s65, s64")
            A("    v_mov_b32 v3, 0")
            A("    v_mov_b32 v4, s60")
            A("    global_store_dword v3, v4, s[12:13] offset:16")
            A(f"    s_mul_i32 s60, s60, {encm}")
            A("    s_min_u32 s60, s60, 20000")
            A("    s_add_u32 s60, s60, 4000")
            A("    s_add_u32 s60, s60, s64")
            A("L_e1:")
            A("    s_sleep 1")
            A("    s_memrealtime s[62:63]")
            A("    s_waitcnt lgkmcnt(0)")
            A("    s_sub_u32 s62, s62, s70")
            A("    s_cmp_lt_u32 s62, s60")
            A("    s_cbranch_scc1 L_e1")
    else:
        A("L_last:")
    if rdiag:
        A("    s_cmp_eq_u32 s2, 0")
        A("    s_cbranch_scc0 L_end")
        A(f"    s_cmp_eq_u32 s{sWAVE}, 0")
        A("    s_cbranch_scc0 L_end")
        A("    s_getreg_b32 s60, hwreg(HW_REG_XCC_ID)")
        A("    s_and_b32 s60, s60, 7")
        A("    s_cbranch_scc0 L_end")
        A("    s_memrealtime s[70:71]")
        A("L_rw:")
        A("    s_sleep 8")
        A("    s_memrealtime s[62:63]")
        A("    s_waitcnt lgkmcnt(0)")
        A("    s_sub_u32 s62, s62, s70")
        A("    s_cmp_lt_u32 s62, 3000")
        A("    s_cbranch_scc1 L_rw")
        A("    v_mov_b32 v3, 0")
        A("    s_mov_b64 exec, 1")
        for bi, (base, off, step) in enumerate((("s[4:5]", 0x8000, 1 << 21), ("s[10:11]", 0x7000, 1 << 21), ("s[4:5]", 0x108000, 1 << 21))):
            A("    s_mov_b32 s72, 0")
            A("    s_mov_b32 s73, 0")
            A(f"    s_mov_b32 s65, {off}")
            A(f"L_rr{bi}:")
            A("    s_mov_b32 s67, 5000")
            for rep in range(3):
                A("    s_memtime s[60:61]")
                A("    s_waitcnt lgkmcnt(0)")
                A(f"    s_load_dword s64, {base}, s65 glc")
                A("    s_waitcnt lgkmcnt(0)")
                A("    s_memtime s[62:63]")
                A("    s_waitcnt lgkmcnt(0)")
                A("    s_sub_u32 s62, s62, s60")
                A("    s_min_u32 s67, s67, s62")
            A("    s_cmp_gt_u32 s67, 490")
            A("    s_cselect_b32 s66, 1, 0")
            A("    s_lshl_b32 s66, s66, s73")
            A("    s_or_b32 s72, s72, s66")
            A(f"    s_add_u32 s65, s65, {step}")
            A("    s_add_u32 s73, s73, 1")
            A("    s_cmp_lt_u32 s73, 32")
            A(f"    s_cbranch_scc1 L_rr{bi}")
            A("    s_xor_b32 s72, s72, 0xaaaaaaaa")
            A("    v_mov_b32 v4, s72")
            A(f"    global_store_dword v3, v4, s[12:13] offset:{8+4*bi}")
    if wdiag:
        A("    s_waitcnt vmcnt(0)")
        A("    s_cmp_eq_u32 s90, 0x13572468")
        A("    s_cbranch_scc0 L_wmark")
        A("    s_mov_b32 s91, 2000")
        if wdiag == 2:
            A(f"    s_bfe_u32 s92, s{sVW}, 0x1001b")
            A("    s_mul_i32 s92, s92, 2000")
            A("    s_add_u32 s91, s91, s92")
        A("    s_memrealtime s[92:93]")
        A("L_wspin:")
        A("    s_sleep 4")
        A("    s_memrealtime s[94:95]")
        A("    s_waitcnt lgkmcnt(0)")
        A("    s_sub_u32 s94, s94, s92")
        A("    s_cmp_lt_u32 s94, s91")
        A("    s_cbranch_scc1 L_wspin")
        A("L_wmark:")
        A("    s_cmp_eq_u32 s2, 255")
        A("    s_cbranch_scc0 L_end")
        A("    v_mov_b32 v3, 0")
        A("    v_mov_b32 v4, 0x13572468")
        A("    global_store_dword v3, v4, s[14:15] offset:64 sc0 sc1")
    A("L_end:")
    A("    s_endpgm")
    nv = D0 + 128
    A('.section .rodata,"a"'); A(".p2align 6"); A(f".amdhsa_kernel {NAME}")
    A(f"  .amdhsa_next_free_vgpr {nv}"); A(f"  .amdhsa_next_free_sgpr {96 if (stamps or wdiag or rdiag) else 72}"); A(f"  .amdhsa_accum_offset {nv}")
    A("  .amdhsa_group_segment_fixed_size 0"); A("  .amdhsa_kernarg_size 48"); A("  .amdhsa_user_sgpr_count 2")
    A("  .amdhsa_user_sgpr_kernarg_segment_ptr 1"); A("  .amdhsa_system_sgpr_workgroup_id_x 1")
    A("  .amdhsa_float_denorm_mode_32 3"); A(".end_amdhsa_kernel")
    return "\n".join(L) + "\n"

if __name__ == "__main__":
    p = argparse.ArgumentParser()
    p.add_argument("-o", required=True)
    for k, prm in inspect.signature(gen).parameters.items():
        p.add_argument("--" + k, type=(lambda s: int(s, 0)) if isinstance(prm.default, int) else str, default=prm.default)
    a = vars(p.parse_args())
    o = a.pop("o")
    if a["sched"] == "def": a["sched"] = DEF_SCHED
    if a["sched"] == "defs": a["sched"] = DEF_SCHED.replace("F0", "F0 @3").replace("F2", "F2 @4")
    open(o, "w").write(gen(**a))
```

```python
import argparse, struct, inspect

NAME = "standalone__instancenorm__prompt_kernel"
SLOT0 = 0x100000
SIG = 0x80000
DEF_SCHED = ("p0 YD t16 R0 OD BAR C0 F0 s Z l s2 l s t l s2 bar t2 l s2 t2 l s2 t2 l s t R1 s BAR l C1 P1 s2 l s Q1 s t G1 F1 "
             "s2 l s2 bar t s l s3 t BAR l2 bar Y t5 R2 V BAR C2 P2 G2 F2 s8")

HEADER = """; Kernarg layout for this problem (48 bytes, ptrs only, base s[0:1]):
; @launch grid=(256,1,1) block=(512,1,1) lds=256
;
;
;
"""

def f2u(x):
    return "0x%08x" % struct.unpack("<I", struct.pack("<f", x))[0]

def gen(sched=DEF_SCHED, nvwg=16, thr=3, two=1, nb=4, stamps=0, spin=200000, pf=1, dsleep=12, px=1, xtry=4, sw=0, mini=0, pad=0, force=-1, ocnt=4, omax=16, wdiag=0, rdiag=0, coh=0, b2swap=0, cfix=0, raw=0, lo1='01234567', lo2='01234567', so1='01234567', so2='01234567', far2=0, enc=-1, encm=5, encs=0, tl=0, encw=0, nowait=1, e0=0, e1=32, esh=11, el0=0, el1=64, qx=0, lay=1, ahi=0, exact=0, addonly=0, pb=0, nomax=0, oddk=-1, zthr=2, far1=0, fflip=0, pack=0, solo=0, farm=0, evn=-1, reb=0, rebw=255, rebs=0):
    L = []
    A = L.append
    UO = 16 if pack else 2048
    SG = (128 if solo == 2 else 32) if pack else SIG
    A(HEADER.rstrip())
    A('.amdgcn_target "amdgcn-amd-amdhsa--gfx950"')
    A(".text")
    if pad:
        A("; unreachable filler: puts the entry into the other 8 KiB class than the kernel descriptor, so that both dies start alike")
        A(f".p2align 8\n.fill {64*pad}, 4, 0xbf810000")
    A(f".globl {NAME}"); A(".p2align 8"); A(f".type {NAME},@function"); A(f"{NAME}:")
    sWAVE, sCH, sQ, sRB, sGB = 24, 25, 26, 28, 29
    sOFFA = [32, 33, 34, 35]; sOFFB = {1: [36, 37], 2: [38, 39]}
    sMASK, sONE, sK = 40, 41, 42
    sG, sB = 44, 46
    sVW = 48; sTAG = 49
    sPOLL = 52
    sSLOT = 56; sPART = 57
    sCNT = 58; sSKIP = 51
    sT = 60
    stamp_regs = [70, 72, 74, 76, 78, 80]
    def stamp(i):
        if stamps: A(f"    s_memrealtime s[{stamp_regs[i]}:{stamp_regs[i]+1}]")
    vOFF, vLDS, vT = 1, 2, 4
    vS = {0: 12, 1: 14, 2: 12}
    vH = {1: 16, 2: 18}
    vAC = {0: 20, 1: 24, 2: 12}
    vDUM = 28
    D0 = 32
    D = {0: D0, 1: D0 + 64, 2: D0 + 96}
    NL = {0: 16, 1: 8, 2: 8}
    UN = {0: "A", 1: "B1", 2: "B2"}
    issued = []
    stamp(0)
    A("    s_load_dwordx8 s[4:11], s[0:1], 0        ; x, g, b, out")
    A("    s_cmpk_ge_u32 s2, 256")
    A("    s_cbranch_scc1 L_end")
    A("    s_setprio 2")
    A("    v_lshrrev_b32 v2, 6, v0                  ; wave")
    A("    v_and_b32 v1, 63, v0")
    A("    v_lshlrev_b32 v1, 4, v1")
    A("    v_lshl_add_u32 v1, v2, 14, v1")
    if lay >= 2:
        A(f"    s_andn2_b32 s{sCH}, s2, 15")
        A(f"    s_and_b32 s{sT}, s2, 3")
        A(f"    s_lshl2_add_u32 s{sCH}, s{sT}, s{sCH}")
        A(f"    s_bfe_u32 s{sT}, s2, 0x20002")
        A(f"    s_add_u32 s{sCH}, s{sCH}, s{sT}")
        if ahi: A(f"    s_add_u32 s{sCH}, s{sCH}, 256")
    else:
        A(f"    s_andn2_b32 s{sCH}, s2, 7")
        if qx: A(f"    s_xor_b32 s{sCH}, s{sCH}, {qx*8}")
        A(f"    s_lshl_b32 s{sCH}, s{sCH}, 1")
        A(f"    s_and_b32 s{sT}, s2, 3")
        A(f"    s_lshl2_add_u32 s{sCH}, s{sT}, s{sCH}")
        A("    s_bitcmp1_b32 s2, 2")
        A(f"    s_addc_u32 s{sCH}, s{sCH}, 0")
    A(f"    s_lshl_b32 s{sT}, s{sCH}, 17")
    def first_loads():
        A("    v_and_b32 v3, 3, v2")
        A("    v_lshl_add_u32 v3, v3, 12, v1")
        A(f"    v_add_u32 v3, s{sT}, v3")
        if mini == 2 and nowait:
            A(f"    s_cmp_lt_u32 s2, {nvwg}")
            A(f"    s_cselect_b32 s62, s{sWAVE}, 0")
            A("    s_cmp_ge_u32 s62, 6")
            A("    s_cbranch_scc1 L_probe")
            A("    s_waitcnt lgkmcnt(0)")
            A("L_first:")
        else:
            A("    s_waitcnt lgkmcnt(0)")
        for k in range(4):
            r = D[0] + 4 * k
            A(f"    global_load_dwordx4 v[{r}:{r+3}], v3, s[4:5] offset:{1024*k} nt")
            issued.append(("L", 0, k))
        if stamps > 1: stamp(1)
    if mini == 1: first_loads()
    A("    s_load_dwordx4 s[12:15], s[0:1], 32")
    A(f"    v_readfirstlane_b32 s{sWAVE}, v2")
    if pf:
        A("    s_getpc_b64 s[30:31]")
        A("L_pc:")
        A("    v_lshlrev_b32 v4, 7, v0")
        if cfix: A("    v_mov_b32 v28, 0")
        A("    v_min_u32 v4, L_last-L_pc, v4")
        A(f"    s_cmp_lt_u32 s{sWAVE}, {pf}")
        A("    s_cbranch_scc0 L_nopf")
        A(f"    global_load_dword v{vDUM}, v4, s[30:31]")
        A("L_nopf:")
    A(f"    s_lshr_b32 s{sQ}, s{sCH}, 4")
    if lay >= 2:
        A(f"    s_mov_b32 s{sOFFA[0]}, s{sT}")
    else:
        A(f"    s_lshl_b32 s{sRB}, s{sQ}, 21")
        A(f"    s_sub_u32 s{sOFFA[0]}, s{sT}, s{sRB}")
    A(f"    s_and_b32 s{sT+2}, s{sWAVE}, 3")
    A(f"    s_lshl_b32 s{sT+2}, s{sT+2}, 12")
    A(f"    s_add_u32 s{sOFFA[0]}, s{sOFFA[0]}, s{sT+2}")
    for i in range(1, 4):
        A(f"    s_xor_b32 s{sOFFA[i]}, s{sOFFA[0]}, {4096*i:#x}")
    A("    s_mov_b32 s18, 0x4000000" if lay >= 2 else "    s_mov_b32 s18, 0x200000")
    A("    s_mov_b32 s19, 0x20000")
    if mini == 2 and not nowait:
        A(f"    s_cmp_lt_u32 s2, {nvwg}")
        A(f"    s_cselect_b32 s62, s{sWAVE}, 0")
        A("    s_cmp_ge_u32 s62, 6")
        A("    s_cbranch_scc1 L_probe")
        A("L_first:")
    if mini in (0, 2): first_loads()
    if mini < 0: A("    s_waitcnt lgkmcnt(0)")
    if lay >= 2:
        A("    s_mov_b32 s16, s4")
        A("    s_and_b32 s17, s5, 0xffff")
    else:
        A(f"    s_add_u32 s16, s4, s{sRB}")
        A("    s_addc_u32 s17, s5, 0")
        A("    s_and_b32 s17, s17, 0xffff")
    BACK = "L_first" if mini == 2 else "L_novote"
    if mini == 2:
        A("    s_branch L_novote")
        A("L_probe:")
    else:
        A(f"    s_cmp_lt_u32 s2, {nvwg}")
        A("    s_cbranch_scc0 L_novote")
    A(f"    s_cmp_eq_u32 s{sWAVE}, {sw}")
    A("    s_cbranch_scc0 L_tally")
    if pb:
        A("    s_lshr_b32 s64, s2, 2")
        A("    s_xor_b32 s64, s64, s2")
        A("    s_bfe_u32 s64, s64, 0x10001")
        A("    s_lshl_b32 s62, s2, 8")
        A("    s_or_b32 s62, s62, s64")
        A("    s_lshl_b32 s62, s62, 13")
        A("    s_add_u32 s62, s62, 0x20c0300")
    else:
        if lay >= 2:
            A("    s_lshr_b32 s64, s2, 3")
            A("    s_xor_b32 s64, s64, s2")
        else:
            A(f"    s_xor_b32 s64, s{sQ}, s2")
        A("    s_and_b32 s64, s64, 1")
        A("    s_lshl_b32 s65, s64, 13")
        A(f"    s_add_u32 s62, s{sT}, s65")
        A("    s_xor_b32 s62, s62, 0x1cf00" if lay >= 2 else "    s_xor_b32 s62, s62, 0x5d700")
    A("    s_xor_b32 s66, s62, 0x2000")
    if mini > 0: A("    s_waitcnt lgkmcnt(0)")
    A("    s_load_dword s67, s[4:5], s62 glc")
    A("    s_load_dword s68, s[4:5], s66 glc")
    if two:
        A("    s_waitcnt lgkmcnt(0)")
        A("    s_load_dword s67, s[4:5], s62 glc")
        A("    s_load_dword s68, s[4:5], s66 glc")
    A("    s_waitcnt lgkmcnt(1)")
    A("    s_getreg_b32 s69, hwreg(HW_REG_XCC_ID)")
    A("    s_lshr_b32 s65, s69, 2")
    A("    s_xor_b32 s64, s64, s65")
    A("    s_xor_b32 s64, s64, s2" if pb else f"    s_xor_b32 s64, s64, s{sQ}")
    A("    s_and_b32 s64, s64, 1")
    A("    s_cselect_b32 s65, 8, 16")
    A("    s_lshl_b32 s65, 1, s65")
    A("    s_add_u32 s65, s65, 1")
    A("    s_getreg_b32 s66, hwreg(HW_REG_IB_STS, 8, 4)")
    A("    s_cmp_eq_u32 s66, 1")
    A("    s_cselect_b32 s69, s65, 1")
    A("    s_atomic_add s69, s[12:13], 192")
    A(f"    s_branch {BACK}")
    A("L_tally:")
    if mini == 2 and nowait: A("    s_waitcnt lgkmcnt(0)")
    if mini != 2:
        A(f"    s_cmp_eq_u32 s{sWAVE}, {sw ^ 1}")
        A("    s_cbranch_scc0 L_novote")
    A(f"    s_cmp_eq_u32 s2, {nvwg-1}")
    A(f"    s_cbranch_scc0 {BACK}")
    A(f"    s_mov_b32 s63, {SLOT0:#x}")
    A("    s_mov_b32 s62, 0")
    if mini > 0 and not (mini == 2 and nowait): A("    s_waitcnt lgkmcnt(0)")
    A("    s_load_dword s63, s[14:15], s63 offset:4")
    if addonly: A("    s_load_dword s68, s[12:13], 128 glc")
    A("L_tpoll:")
    A("    s_load_dword s66, s[12:13], 192 glc")
    A("    s_add_u32 s62, s62, 1")
    A("    s_waitcnt lgkmcnt(0)")
    A("    s_bfe_u32 s64, s66, 0x80008")
    A("    s_bfe_u32 s65, s66, 0x80010")
    A("    s_absdiff_i32 s67, s64, s65")
    A(f"    s_cmp_ge_u32 s67, {thr}")
    A("    s_cbranch_scc1 L_decide")
    A("    s_and_b32 s67, s66, 0xff")
    A(f"    s_cmp_ge_u32 s67, {nvwg}")
    A("    s_cbranch_scc1 L_decide")
    A("    s_cmp_lt_u32 s62, 12")
    A("    s_cbranch_scc1 L_tpoll")
    A("L_decide:")
    A("    s_cmp_gt_u32 s64, s65")
    A("    s_cselect_b32 s65, 24, 16")
    if force >= 0: A(f"    s_mov_b32 s65, {16 + 8*force}")
    A("    s_getreg_b32 s69, hwreg(HW_REG_XCC_ID)")
    A("    s_sub_u32 s69, s69, s2")
    A("    s_and_b32 s69, s69, 7")
    A("    s_or_b32 s65, s65, s69")
    A("    s_lshl_b32 s65, s65, 24")
    A("    s_and_b32 s66, s66, 0xffffff")
    A("    s_or_b32 s64, s66, s65")
    A("    s_add_u32 s65, s63, 0x9e3779b9")
    if addonly:
        A("    s_cmp_eq_u32 s68, 0")
        A("    s_cselect_b64 s[64:65], s[64:65], 0")
        for o in (0, 64, 128):
            A(f"    s_atomic_add_x2 s[64:65], s[12:13], {o}")
    else:
        A("    s_mov_b64 s[66:67], 0")
        for o in (0, 64, 128):
            A(f"    s_atomic_cmpswap_x2 s[64:67], s[12:13], {o}")
    if mini == 2: A("    s_branch L_first")
    A("L_novote:")
    def soff(u, k):
        if u and (farm >> (8 * (u - 1) + k)) & 1: return 86 + 2 * (u - 1) + k // 4
        if u == 2 and (far2 >> k) & 1: return 50
        if u == 1 and (far1 >> k) & 1: return 50
        return sOFFA[k // 4] if u == 0 else sOFFB[u][k // 4]
    def voff(u, k):
        if not (u and (coh >> (8 * (u - 1) + k)) & 1): return 1
        page = (k // 4) ^ (b2swap if u == 2 else 0)
        return 28 if (cfix and page == 0) else 29
    def load(u, k):
        vOFF = voff(u, k)
        r = D[u] + 4 * k
        if reb == u * 10 + k and u:
            A("    s_cmp_eq_u32 s43, 1")
            A("    s_cbranch_scc1 L_rl")
            A(f"    buffer_load_dwordx4 v[{r}:{r+3}], v{vOFF}, s[16:19], s{soff(u,k)} offen offset:{(k%4)*1024} nt")
            A("    s_cmp_eq_u32 s43, 2")
            A("    s_cbranch_scc0 L_rl")
            A(f"    s_xor_b32 s50, s{soff(u,k)}, 0x2000")
            A(f"    buffer_load_dwordx4 v[160:163], v{vOFF}, s[16:19], s50 offen offset:{(k%4)*1024} nt")
            A("L_rl:")
            issued.append(("C", u, k))
            return
        A(f"    buffer_load_dwordx4 v[{r}:{r+3}], v{vOFF}, s[16:19], s{soff(u,k)} offen offset:{(k%4)*1024} nt")
        issued.append(("L", u, k))
    normed = set(); started = set(); unpacked = set()
    def norm(u, k):
        r0 = D[u] + 4 * k
        ac = vAC[u]
        if exact == 1 and (u, k) not in unpacked:
            for j in range(4):
                A(f"    v_dot2_f32_bf16 v{4+2*j}, v{r0+j}, s30, v{ac+1}")
                A(f"    v_dot2_f32_bf16 v{5+2*j}, v{r0+j}, s31, v{ac+1}")
            for j in range(4):
                t = 4 + 2 * j
                A(f"    v_pk_fma_f32 v[{t}:{t+1}], v[{t}:{t+1}], v[{ac}:{ac+1}], v[{ac+2}:{ac+3}] op_sel_hi:[1,0,0]")
            for j in range(4):
                A(f"    v_cvt_pk_bf16_f32 v{r0+j}, v{4+2*j}, v{5+2*j}")
            normed.add((u, k))
            return
        for j in range(4):
            r = r0 + j
            if (u, k) in unpacked:
                t = D[0] + 8 * k + 2 * j
                if exact: A(f"    v_pk_add_f32 v[{t}:{t+1}], v[{t}:{t+1}], v[{ac}:{ac+1}] op_sel:[0,1] op_sel_hi:[1,1]")
                A(f"    v_pk_fma_f32 v[{t}:{t+1}], v[{t}:{t+1}], v[{ac}:{ac+1}], v[{ac+2}:{ac+3}] op_sel_hi:[1,0,0]")
                A(f"    v_cvt_pk_bf16_f32 v{r}, v{t}, v{t+1}")
                continue
            t = vT + 2 * (j & 1)
            A(f"    v_lshlrev_b32 v{t}, 16, v{r}")
            A(f"    v_and_b32 v{t+1}, s{sMASK}, v{r}")
            if exact: A(f"    v_pk_add_f32 v[{t}:{t+1}], v[{t}:{t+1}], v[{ac}:{ac+1}] op_sel:[0,1] op_sel_hi:[1,1]")
            A(f"    v_pk_fma_f32 v[{t}:{t+1}], v[{t}:{t+1}], v[{ac}:{ac+1}], v[{ac+2}:{ac+3}] op_sel_hi:[1,0,0]")
            A(f"    v_cvt_pk_bf16_f32 v{r}, v{t}, v{t+1}")
        normed.add((u, k))
    def store(u, k):
        vOFF = voff(u, k)
        if (u, k) not in normed: norm(u, k)
        r0 = D[u] + 4 * k
        if reb == u * 10 + k and u:
            A("    s_cmp_eq_u32 s43, 1")
            A("    s_cbranch_scc1 L_rs")
            A(f"    buffer_store_dwordx4 v[{r0}:{r0+3}], v{vOFF}, s[20:23], s{soff(u,k)} offen offset:{(k%4)*1024} sc0 sc1")
            A("    s_cmp_eq_u32 s43, 2")
            A("    s_cbranch_scc0 L_rs")
            A(f"    buffer_store_dwordx4 v[160:163], v{vOFF}, s[20:23], s50 offen offset:{(k%4)*1024} sc0 sc1")
            A("L_rs:")
            issued.append(("C", u, k + 100))
            return
        A(f"    buffer_store_dwordx4 v[{r0}:{r0+3}], v{vOFF}, s[20:23], s{soff(u,k)} offen offset:{(k%4)*1024} sc0 sc1")
        issued.append(("S", u, k))
    def tally(u, k):
        i = issued.index(("L", u, k)) if ("L", u, k) in issued else issued.index(("C", u, k))
        A(f"    s_waitcnt vmcnt({min(63, sum(1 for o in issued[i+1:] if o[0] != 'C'))})")
        s = vS[u]
        for j in range(4):
            r = D[u] + 4 * k + j
            if u not in started:
                started.add(u)
                A(f"    v_mov_b32 v{s}, 0")
                A(f"    v_mov_b32 v{s+1}, 0")
            A(f"    v_dot2c_f32_bf16 v{s}, s{sONE}, v{r}")
            A(f"    v_dot2c_f32_bf16 v{s+1}, v{r}, v{r}")
    def reduce(u):
        nl = NL[u] * 8
        s = vS[u]
        A("    s_nop 2")
        A(f"    v_mul_f32 v8, {f2u(1.0/nl)}, v{s}")
        A(f"    v_fma_f32 v10, -v8, v{s}, v{s+1}")
        A(f"    v_readfirstlane_b32 s{sK}, v8              ; pivot")
        A(f"    v_mov_b32 v3, s{sWAVE}")
        A("    v_lshlrev_b32 v3, 3, v3")
        A(f"    v_subrev_f32 v8, s{sK}, v8")
        A(f"    v_mul_f32 v9, {f2u(float(nl))}, v8")
        A("    v_fmac_f32 v10, v9, v8")
        for dpp in ["quad_perm:[1,0,3,2] row_mask:0xf", "quad_perm:[2,3,0,1] row_mask:0xf", "row_half_mirror row_mask:0xf",
                    "row_mirror row_mask:0xf", "row_bcast:15 row_mask:0xa", "row_bcast:31 row_mask:0xc"]:
            A("    s_nop 0")
            A(f"    v_add_f32_dpp v8, v8, v8 {dpp} bank_mask:0xf")
            A(f"    v_add_f32_dpp v10, v10, v10 {dpp} bank_mask:0xf")
        A(f"    v_mul_f32 v9, {f2u(nl/64.0)}, v8")
        A("    v_fma_f32 v11, -v9, v8, v10")
        A(f"    v_mov_b32 v10, s{sK}")
        A(f"    v_fmac_f32 v10, {f2u(1.0/64)}, v8")
        A("    s_mov_b32 exec_lo, 0")
        A("    s_brev_b32 exec_hi, 1")
        A(f"    ds_write_b64 v3, v[10:11] offset:{64*u}")
        A("    s_mov_b64 exec, -1")
    def combine(u):
        nel = NL[u] * 512
        A(f"    ds_read_b64 v[10:11], v{vLDS} offset:{64*u}")
        A("    s_waitcnt lgkmcnt(0)")
        steps = ["quad_perm:[1,0,3,2]", "quad_perm:[2,3,0,1]", "row_half_mirror"]
        for i, dpp in enumerate(steps):
            src = "v10" if i == 0 else "v8"
            if i: A("    s_nop 1")
            A(f"    v_add_f32_dpp v8, {src}, {src} {dpp} row_mask:0xf bank_mask:0xf")
        A(f"    v_mul_f32 v8, 0x3e000000, v8")
        A("    v_sub_f32 v9, v10, v8")
        A(f"    v_mul_f32 v10, {f2u(float(nel))}, v9")
        A("    v_fma_f32 v11, v10, v9, v11")
        for dpp in steps:
            A("    s_nop 1")
            A(f"    v_add_f32_dpp v11, v11, v11 {dpp} row_mask:0xf bank_mask:0xf")
    def finalize(u):
        ac = vAC[u]
        if u == 0:
            A(f"    s_and_b32 s{sT}, s{sCH}, 1")
            A(f"    s_lshl_b32 s{sT}, s{sT}, 4")
            A(f"    s_lshr_b32 s{sT+1}, s{sG}, s{sT}")
            A(f"    s_lshl_b32 s{sT+1}, s{sT+1}, 16")
            A(f"    s_lshr_b32 s{sT+2}, s{sB}, s{sT}")
            A(f"    s_lshl_b32 s{sT+2}, s{sT+2}, 16")
        elif lay == 3:
            A(f"    s_and_b32 s{sT}, s2, 8")
            A(f"    s_lshl_b32 s{sT}, s{sT}, 1")
            A(f"    s_lshr_b32 s{sT+1}, s{sG+1 if u == 1 else 50}, s{sT}")
            A(f"    s_lshl_b32 s{sT+1}, s{sT+1}, 16")
            A(f"    s_lshr_b32 s{sT+2}, s{sB+1 if u == 1 else 59}, s{sT}")
            A(f"    s_lshl_b32 s{sT+2}, s{sT+2}, 16")
        elif u == 1:
            A(f"    s_lshl_b32 s{sT+1}, s{sG+1}, 16")
            A(f"    s_lshl_b32 s{sT+2}, s{sB+1}, 16")
        else:
            A(f"    s_and_b32 s{sT+1}, s{sG+1}, s{sMASK}")
            A(f"    s_and_b32 s{sT+2}, s{sB+1}, s{sMASK}")
        A("    v_cvt_pk_bf16_f32 v9, v8, v8")
        A("    v_lshlrev_b32 v9, 16, v9                 ; mu")
        A("    v_sub_f32 v8, v8, v9")
        A("    v_mul_f32 v8, v8, v8")
        A(f"    v_fmac_f32 v8, {f2u(1.0/65536)}, v11")
        if not nomax: A("    v_max_f32 v8, 0, v8")
        A("    v_cvt_pk_bf16_f32 v8, v8, v8")
        A("    v_lshlrev_b32 v8, 16, v8")
        A(f"    v_add_f32 v8, {f2u(1e-5)}, v8")
        A("    v_cvt_pk_bf16_f32 v8, v8, v8")
        A("    v_lshlrev_b32 v8, 16, v8")
        A("    v_sqrt_f32 v8, v8")
        A("    s_nop 0")
        A("    v_cvt_pk_bf16_f32 v8, v8, v8")
        A("    v_lshlrev_b32 v8, 16, v8")
        A("    v_rcp_f32 v8, v8")
        A(f"    v_mov_b32 v{ac+2}, s{sT+2}")
        A(f"    v_mul_f32 v{ac}, s{sT+1}, v8               ; a = g/s")
        if exact: A(f"    v_xor_b32 v{ac+1}, 0x80000000, v9          ; -mu")
        else: A(f"    v_fma_f32 v{ac+2}, -v9, v{ac}, v{ac+2}         ; c = b - mu*a")
    def publish(u):
        A(f"    ; --- {UN[u]}: hand {{mean, tag, M2, tag}} of this half to the partner (one copy per reading wave, whole lines)")
        A(f"    v_mov_b32 v{vH[u]}, v8")
        A(f"    v_mov_b32 v{vH[u]+1}, v11")
        if not solo:
            A(f"    s_cmp_eq_u32 s{sWAVE}, 0")
            A(f"    s_cbranch_scc0 L_nopub{u}")
        A(f"    v_mov_b32 v9, s{sTAG}")
        A("    v_mov_b32 v10, v11")
        A(f"    v_mov_b32 v11, s{sTAG}")
        if pack:
            A(f"    v_lshl_add_u32 v3, v0, 7, s{sSLOT}")
            A("    s_mov_b64 exec, 1" if solo else "    s_mov_b64 exec, 0xff")
            A(f"    global_store_dwordx4 v3, v[8:11], s[14:15] offset:{UO*(u-1)} sc0 sc1")
            A("    s_mov_b64 exec, -1")
            A("    s_nop 0")
        else:
            A(f"    v_lshl_add_u32 v3, v0, 4, s{sSLOT}")
            A(f"    global_store_dwordx4 v3, v[8:11], s[14:15] offset:{UO*(u-1)} sc0 sc1")
            A("    s_nop 1")
        A(f"L_nopub{u}:")
    pre = set()
    def poll(u):
        A(f"    s_load_dwordx4 s[{sPOLL}:{sPOLL+3}], s[14:15], s{sPART} offset:{UO*(u-1)} glc")
    def partner(u):
        A(f"    ; --- {UN[u]}: wait for the partner's half and merge")
        A(f"    s_mov_b32 s{sCNT}, 0")
        if u in pre: A(f"    s_branch L_chk{u}")
        A(f"L_poll{u}:")
        poll(u)
        A(f"    s_add_u32 s{sCNT}, s{sCNT}, 1")
        A(f"    s_cmp_lt_u32 s{sCNT}, {spin}")
        A("    s_cbranch_scc0 L_end")
        A(f"L_chk{u}:")
        A("    s_waitcnt lgkmcnt(0)")
        A(f"    s_xor_b32 s{sT}, s{sPOLL+1}, s{sTAG}")
        A(f"    s_xor_b32 s{sT+1}, s{sPOLL+3}, s{sTAG}")
        A(f"    s_or_b32 s{sT}, s{sT}, s{sT+1}")
        A(f"    s_cbranch_scc1 L_poll{u}")
        if stamps: A(f"    s_mov_b32 s{82+u}, s{sCNT}")
        A(f"    v_add_f32 v8, s{sPOLL}, v{vH[u]}")
        A(f"    v_subrev_f32 v9, s{sPOLL}, v{vH[u]}")
        A(f"    v_add_f32 v11, s{sPOLL+2}, v{vH[u]+1}")
        A("    v_mul_f32 v8, 0.5, v8")
        A(f"    v_mul_f32 v10, {f2u(16384.0)}, v9")
        A("    v_fmac_f32 v11, v10, v9")
    ndec = [0]
    def decision():
        n = ndec[0]; ndec[0] += 1
        A(f"    s_mov_b32 s{sCNT}, 0")
        A(f"L_dtry{n}:")
        A(f"    s_lshl_b32 s{sT}, s{sCNT}, 6")
        A(f"    s_load_dwordx2 s[{sVW}:{sVW+1}], s[12:13], s{sT}")
        A(f"L_dchk{n}:")
        A("    s_waitcnt lgkmcnt(0)")
        A(f"    s_cmp_lg_u32 s{sVW}, 0")
        A(f"    s_cbranch_scc1 L_dgot{n}")
        A(f"    s_add_u32 s{sCNT}, s{sCNT}, 1")
        A(f"    s_sleep {dsleep}")
        A(f"    s_cmp_lt_u32 s{sCNT}, 3")
        A(f"    s_cbranch_scc1 L_dtry{n}")
        A(f"    s_cmp_lt_u32 s{sCNT}, {spin}")
        A("    s_cbranch_scc0 L_end")
        A("    v_mov_b32 v3, 0")
        A(f"    global_load_dwordx2 v[{vT}:{vT+1}], v3, s[12:13] sc1")
        A("    s_waitcnt vmcnt(0)")
        A(f"    v_readfirstlane_b32 s{sVW}, v{vT}")
        A(f"    v_readfirstlane_b32 s{sVW+1}, v{vT+1}")
        A(f"    s_branch L_dchk{n}")
        A(f"L_dgot{n}:")
        if stamps: A(f"    s_mov_b32 s82, s{sCNT}")
        A(f"    s_lshr_b32 s{sT}, s{sVW}, 24")
        A(f"    s_add_u32 s{sT+1}, s{sT}, s2")
        if oddk >= 0 or evn >= 0 or reb: A(f"    s_and_b32 s27, s{sT+1}, 1")
        if reb:
            if rebs: A("    s_xor_b32 s27, s27, 1")
            A("    s_sub_u32 s43, 2, s27")
            A(f"    s_lshr_b32 s64, {rebw}, s{sWAVE}")
            A("    s_and_b32 s64, s64, 1")
            A("    s_cselect_b32 s43, s43, 0")
        A(f"    s_bfe_u32 s{sT+2}, s{sT+1}, 0x10002        ; member = y >> 2")
        if px == 1:
            A(f"    s_xor_b32 s{sT+1}, s{sT+1}, s{sT+2}")
        elif px:
            A(f"    s_mul_i32 s{sT+3}, s{sT+2}, {px}")
            A(f"    s_xor_b32 s{sT+1}, s{sT+1}, s{sT+3}")
        A(f"    s_and_b32 s{sT+1}, s{sT+1}, 3              ; pair")
        A(f"    s_lshr_b32 s{sT}, s{sT}, 3")
        A(f"    s_xor_b32 s{sT}, s{sT}, s{sT+2}")
        if lay == 3:
            A("    s_lshr_b32 s64, s2, 5")
            A(f"    s_xor_b32 s{sT}, s{sT}, s64")
        else:
            A(f"    s_xor_b32 s{sT}, s{sT}, s{sQ}")
        A(f"    s_and_b32 s{sT}, s{sT}, 1")
        if raw:
            A("    s_load_dword s64, s[12:13], 244")
            A("    s_waitcnt lgkmcnt(0)")
            A(f"    s_lshr_b32 s65, s{sVW}, 27")
            A("    s_xor_b32 s64, s64, s65")
            if raw == 1: A("    s_xor_b32 s64, s64, 1")
            A("    s_and_b32 s64, s64, 1")
            A(f"    s_lshl1_add_u32 s{sT}, s{sT}, s64")
            A(f"    s_and_b32 s{sT+3}, s{sWAVE}, 1")
        else:
            A(f"    s_and_b32 s{sT+3}, s{sWAVE}, 1")
            A(f"    s_lshl1_add_u32 s{sT}, s{sT}, s{sT+3}")
        if cfix:
            A("    ; lane layouts whose four 256 B pieces (32 KiB apart) share a memory channel in out, one per page of the wave")
            A(f"    s_lshl2_add_u32 s64, s{sT+3}, s{sT}")
            A("    s_lshr_b32 s65, s10, 12")
            A("    s_xor_b32 s66, s64, 1")
            A("    s_add_u32 s64, s64, s65")
            A("    s_add_u32 s66, s66, s65")
            A("    s_lshr_b32 s64, s64, 3")
            A("    s_lshr_b32 s66, s66, 3")
            A("    v_bfe_u32 v4, v0, 4, 2")
            A("    v_and_b32 v5, 15, v0")
            A("    v_lshlrev_b32 v5, 4, v5")
            A("    v_lshl_add_u32 v5, v4, 15, v5")
            A(f"    v_lshl_add_u32 v5, s{sT+3}, 14, v5")
            A("    v_lshrrev_b32 v6, 7, v0")
            for vr, sr in ((28, 64), (29, 66)):
                A(f"    v_add_u32 v7, s{sr}, v4")
                A("    v_xor_b32 v7, v7, v6")
                A("    v_and_b32 v7, 3, v7")
                A(f"    v_lshl_add_u32 v{vr}, v7, 8, v5")
        A(f"    s_lshl_b32 s{sT}, s{sT}, 12")
        A(f"    s_lshl_b32 s{sT+3}, s{sT+1}, 19")
        A(f"    s_add_u32 s{sT}, s{sT}, s{sT+3}")
        if lay == 3:
            A("    s_lshr_b32 s64, s2, 5")
            A(f"    s_bfe_u32 s{sT+3}, s2, 0x20003")
            A(f"    s_lshl4_add_u32 s{sT+3}, s64, s{sT+3}")
            A(f"    s_add_u32 s{sT+3}, s{sT+3}, 0x100")
            A(f"    s_lshl_b32 s64, s{sT+3}, 17")
            A(f"    s_add_u32 s{sOFFB[1][0]}, s{sT}, s64")
            A(f"    s_xor_b32 s{sOFFB[1][1]}, s{sOFFB[1][0]}, 0x1000")
            A(f"    s_xor_b32 s{sOFFB[2][b2swap]}, s{sOFFB[1][0]}, 0x1000000")
            A(f"    s_xor_b32 s{sOFFB[2][1-b2swap]}, s{sOFFB[1][0]}, 0x1001000")
            A(f"    s_lshl2_add_u32 s{sT}, s{sT+1}, s{sT+3}")
            A(f"    s_andn2_b32 s{sT}, s{sT}, 1")
            A(f"    s_lshl_b32 s{sT}, s{sT}, 1")
            A(f"    s_load_dword s{sG+1}, s[6:7], s{sT}")
            A(f"    s_load_dword s{sB+1}, s[8:9], s{sT}")
            A(f"    s_load_dword s50, s[6:7], s{sT} offset:256")
            A(f"    s_load_dword s59, s[8:9], s{sT} offset:256")
            A(f"    s_lshr_b32 s{sT+3}, s2, 3")
            A(f"    s_lshl2_add_u32 s{sT+1}, s{sT+3}, s{sT+1}")
        elif lay >= 2:
            A(f"    s_and_b32 s{sT+3}, s{sCH}, 0x1f2")
            A(f"    s_xor_b32 s{sT+3}, s{sT+3}, 0x100")
            A(f"    s_lshl_b32 s64, s{sT+3}, 17")
            A(f"    s_add_u32 s{sOFFB[1][0]}, s{sT}, s64")
            A(f"    s_xor_b32 s{sOFFB[1][1]}, s{sOFFB[1][0]}, 0x1000")
            A(f"    s_xor_b32 s{sOFFB[2][b2swap]}, s{sOFFB[1][0]}, 0x20000")
            A(f"    s_xor_b32 s{sOFFB[2][1-b2swap]}, s{sOFFB[1][0]}, 0x21000")
            if farm:
                A(f"    s_lshr_b32 s65, s{sVW}, 27")
                A("    s_xor_b32 s65, s43, s65")
                for i in range(4):
                    A(f"    s_lshr_b32 s64, s{36+i}, 12")
                    A("    s_xor_b32 s64, s64, s65")
                    A("    s_and_b32 s64, s64, 1")
                    A("    s_lshl_b32 s64, s64, 13")
                    A(f"    s_xor_b32 s{86+i}, s{36+i}, s64")
            if far1:
                A(f"    s_lshr_b32 s65, s{sVW}, 27")
                A("    s_xor_b32 s64, s43, s65")
                A(f"    s_xor_b32 s64, s64, s{sWAVE}")
                if fflip: A("    s_xor_b32 s64, s64, 1")
                A("    s_and_b32 s64, s64, 1")
                A("    s_lshl_b32 s64, s64, 13")
                A(f"    s_xor_b32 s50, s{sOFFB[1][0]}, s64")
            A(f"    s_lshl2_add_u32 s{sT}, s{sT+1}, s{sT+3}")
            A(f"    s_lshl_b32 s{sT}, s{sT}, 1")
            A(f"    s_load_dword s{sG+1}, s[6:7], s{sT}")
            A(f"    s_load_dword s{sB+1}, s[8:9], s{sT}")
            A(f"    s_lshr_b32 s{sT+3}, s2, 3")
            A(f"    s_lshl2_add_u32 s{sT+1}, s{sT+3}, s{sT+1}")
        else:
            A(f"    s_xor_b32 s{sOFFB[1][0]}, s{sT}, 0x40000")
            A(f"    s_xor_b32 s{sOFFB[1][1]}, s{sT}, 0x41000")
            A(f"    s_xor_b32 s{sOFFB[2][b2swap]}, s{sT}, 0x60000")
            A(f"    s_xor_b32 s{sOFFB[2][1-b2swap]}, s{sT}, 0x61000")
            if far2: A(f"    s_xor_b32 s50, s{sOFFB[2][0]}, 0x2000")
            A(f"    s_lshl2_add_u32 s{sT+1}, s{sQ}, s{sT+1}")
            A(f"    s_lshl_b32 s{sT}, s{sT+1}, 3")
            A(f"    s_load_dword s{sG+1}, s[6:7], s{sT} offset:4")
            A(f"    s_load_dword s{sB+1}, s[8:9], s{sT} offset:4")
        A(f"    s_lshl2_add_u32 s{sSLOT}, s{sT+1}, s{sT+2}")
        A(f"    s_lshl_b32 s{sSLOT}, s{sSLOT}, 10")
        A(f"    s_add_u32 s{sSLOT}, s{sSLOT}, {SLOT0:#x}")
        A(f"    s_xor_b32 s{sPART}, s{sSLOT}, 0x400")
        if not solo:
            A(f"    s_lshl_b32 s{sT+3}, s{sWAVE}, 7")
            A(f"    s_add_u32 s{sPART}, s{sPART}, s{sT+3}")
        stamp(2)
    for k in range(0 if mini < 0 else 4, 16):
        load(0, k)
        if k == (3 if mini < 0 else 7):
            A(f"    s_andn2_b32 s{sT+1}, s{sCH}, 1")
            A(f"    s_lshl_b32 s{sT+1}, s{sT+1}, 1")
            A(f"    s_load_dword s{sG}, s[6:7], s{sT+1}")
            A(f"    s_load_dword s{sB}, s[8:9], s{sT+1}")
            if lay >= 2:
                A("    s_mov_b32 s20, s10")
                A("    s_and_b32 s21, s11, 0xffff")
                A("    s_mov_b32 s22, 0x4000000")
            else:
                A(f"    s_add_u32 s20, s10, s{sRB}")
                A("    s_addc_u32 s21, s11, 0")
                A("    s_and_b32 s21, s21, 0xffff")
                A("    s_mov_b32 s22, 0x200000")
            A("    s_mov_b32 s23, 0x20000")
            A(f"    s_mov_b32 s{sMASK}, 0xffff0000")
            A(f"    s_mov_b32 s{sONE}, 0x3f803f80")
            if exact == 1:
                A("    s_movk_i32 s30, 0x3f80")
                A("    s_mov_b32 s31, 1.0")
            A(f"    s_mov_b64 s[{sSLOT}:{sSLOT+1}], 0")
            if tl & 1: A(f"    s_load_dword s68, s[10:11], s{sT}")
            if far1 or farm: A("    s_load_dword s43, s[14:15], 0xF0004")
            if tl & 12: A(f"    s_xor_b32 s{sT+2}, s{sT}, 0x2000000")
            if tl & 4: A(f"    s_load_dword s43, s[4:5], s{sT+2}")
            if tl & 8: A(f"    s_load_dword s59, s[10:11], s{sT+2}")
            if tl & 2: A(f"    s_load_dword s69, s[14:15], 0xc0000")
            if coh and cfix:
                A("    v_mov_b32 v29, 0")
            elif coh:
                A("    v_and_b32 v29, 15, v0")
                A("    v_bfe_u32 v4, v0, 4, 2")
                A("    v_lshlrev_b32 v29, 4, v29")
                A("    v_lshl_add_u32 v29, v4, 15, v29")
                A("    v_lshrrev_b32 v5, 1, v2")
                A("    v_xor_b32 v4, v4, v5")
                A("    v_lshl_add_u32 v29, v4, 8, v29")
                A("    v_and_b32 v4, 1, v2")
                A("    v_lshl_add_u32 v29, v4, 14, v29")
            if wdiag: A("    s_load_dword s90, s[14:15], 0x40")
            A("    v_and_b32 v2, 7, v0")
            A("    v_lshlrev_b32 v2, 3, v2")
            if " o " in sched:
                A("    v_mov_b32 v30, 0")
                A("    v_mov_b32 v31, 0")
                A("    ds_write_b64 v30, v[30:31] offset:192")
                if solo: A("    ds_write2_b32 v30, v30, v30 offset0:55 offset1:59")
                A(f"    s_mov_b32 s{sSKIP}, 99")
    if mini == 1: A("    s_waitcnt lgkmcnt(0)")
    if stamps == 1: stamp(1)
    lq = [(1, int(k)) for k in lo1] + [(2, int(k)) for k in lo2]
    tq = [(0, k) for k in range(16)] + lq
    sq = [(0, k) for k in range(16)] + [(1, int(k)) for k in so1] + [(2, int(k)) for k in so2]
    nq = list(sq)
    first = []; guarded = []
    for tok in sched.split():
        c, arg = tok[0], tok[1:]
        n = int(arg) if arg.isdigit() else None
        if tok == "YD":
            first.extend(lq.pop(0) for _ in range(nb))
            A(f"    s_cmp_lt_u32 s{sWAVE}, 4")
            A("    s_cbranch_scc1 L_skipY")
            decision()
            for op in first: load(*op)
            A("    s_branch L_joinY")
            A("L_skipY:")
            A("    s_waitcnt vmcnt(0)")
            A("L_joinY:")
        elif tok == "OD":
            A(f"    s_cmp_lt_u32 s{sWAVE}, 4")
            A("    s_cbranch_scc0 L_skipO")
            decision()
            if evn >= 0:
                A(f"    s_cmp_eq_u32 s27, {evn}")
                A("    s_cbranch_scc1 L_skipO")
            keep = len(issued)
            for op in first: load(*op)
            del issued[keep:]
            A("L_skipO:")
        elif tok == "OL":
            A(f"    s_cmp_lt_u32 s{sWAVE}, 4")
            A("    s_cbranch_scc0 L_skipL")
            A(f"    s_cmp_eq_u32 s27, {evn}")
            A("    s_cbranch_scc0 L_skipL")
            keep = len(issued)
            for op in first: load(*op)
            del issued[keep:]
            A("L_skipL:")
        elif tok == "BAR":
            A("    s_waitcnt lgkmcnt(0)")
            A("    s_barrier")
        elif tok == "bar": A("    s_barrier")
        elif tok == "Z":
            A("    ; --- fill the own slot with ~tag: known base for the adds below, and early polls are served by the memory-side cache")
            A(f"    s_cmp_eq_u32 s{sWAVE}, 0")
            A("    s_cbranch_scc0 L_noz")
            A(f"    v_lshl_add_u32 v3, v0, 4, s{sSLOT}")
            A(f"    s_not_b32 s{sT}, s{sTAG}")
            for i in range(4): A(f"    v_mov_b32 v{vT+i}, s{sT}")
            if solo: A(f"    s_mov_b64 exec, {0xff if solo == 1 else 0xffff}")
            if pack == 2:
                A("    s_mov_b32 exec_lo, 0x0f0f0f0f")
                A("    s_mov_b32 exec_hi, 0x0f0f0f0f")
            A(f"    global_store_dwordx4 v3, v[{vT}:{vT+3}], s[14:15] sc0 sc1")
            if pack == 2 or solo: A("    s_mov_b64 exec, -1")
            if not pack:
                A(f"    global_store_dwordx4 v3, v[{vT}:{vT+3}], s[14:15] offset:2048 sc0 sc1")
                A(f"    v_add_u32 v3, {SIG:#x}, v3")
                A(f"    global_store_dwordx4 v3, v[{vT}:{vT+3}], s[14:15] sc0 sc1")
            A("    s_nop 1")
            A("L_noz:")
        elif tok == "Y":
            A("    ; --- flag: every load of this workgroup has been issued")
            A(f"    s_cmp_eq_u32 s{sWAVE}, 7")
            A("    s_cbranch_scc0 L_noy")
            if pack:
                A("    v_and_b32 v3, 63, v0")
                A(f"    v_lshl_add_u32 v3, v3, 7, s{sSLOT}")
                A(f"    v_mov_b32 v{vT}, s{sTAG}")
                A("    s_mov_b64 exec, 1" if solo else "    s_mov_b64 exec, 0xff")
                A(f"    global_store_dword v3, v{vT}, s[14:15] offset:{SG} sc0 sc1")
                A("    s_mov_b64 exec, -1")
            else:
                A(f"    s_add_u32 s{sT}, s{sSLOT}, {SIG - 7*1024:#x}")
                A(f"    v_lshl_add_u32 v3, v0, 4, s{sT}")
                for i in range(4): A(f"    v_mov_b32 v{vT+i}, s{sTAG}")
                A(f"    global_store_dwordx4 v3, v[{vT}:{vT+3}], s[14:15] sc0 sc1")
                A("    s_nop 1")
            A("L_noy:")
        elif tok == "V":
            A("    ; --- DRAM reads starve behind a burst of writes: before the last stores, give the other workgroups of the")
            A(f"    s_and_b32 s{sT+3}, s{sWAVE}, 1")
            A(f"    s_lshr_b32 s{sT+2}, s{sWAVE}, 1")
            A(f"    s_lshl2_add_u32 s{sT+2}, s{sT+2}, s{sT+3}")
            A(f"    s_lshl_b32 s{sT+2}, s{sT+2}, 10")
            A(f"    s_andn2_b32 s{sT+3}, s{sSLOT}, 0x3fff")
            A(f"    s_add_u32 s{sT+2}, s{sT+2}, s{sT+3}")
            A(f"    s_mov_b32 s{sCNT}, 0")
            A("L_v:")
            A(f"    s_load_dword s{sT}, s[14:15], s{sT+2} offset:{SG:#x}")
            A(f"    s_add_u32 s{sT+2}, s{sT+2}, 128")
            A(f"    s_add_u32 s{sCNT}, s{sCNT}, 1")
            A("    s_waitcnt lgkmcnt(0)")
            A(f"    s_cmp_eq_u32 s{sT}, s{sTAG}")
            A("    s_cbranch_scc1 L_vd")
            A(f"    s_cmp_lt_u32 s{sCNT}, {xtry}")
            A("    s_cbranch_scc1 L_v")
            A("L_vd:")
        elif c == "g":
            for _ in range(n or 1):
                op = sq.pop(0); nq.remove(op)
                k = len(guarded); guarded.append(op)
                if k == 0:
                    A("    ; --- a workgroup that has fallen behind (hurry flag) puts the rest of these stores off and gets its last loads out")
                    A("    ds_read_b32 v31, v30 offset:192")
                else:
                    A(f"    s_cmp_lt_u32 s{sSKIP}, 99")
                    A(f"    s_cbranch_scc1 L_gs{k}")
                A("    s_waitcnt lgkmcnt(0)")
                A(f"    v_readfirstlane_b32 s{sT}, v31")
                if k == oddk: A(f"    s_or_b32 s{sT}, s{sT}, s27")
                else: A(f"    s_cmp_lg_u32 s{sT}, 0")
                A(f"    s_cselect_b32 s{sSKIP}, {k}, 99")
                A(f"    s_cbranch_scc1 L_gs{k}")
                A("    ds_read_b32 v31, v30 offset:192")
                keep = len(issued)
                store(*op)
                del issued[keep:]
                normed.discard(op)
                A(f"L_gs{k}:")
        elif tok == "e":
            A("    ; --- the stores that were put off")
            A(f"    s_cmp_lt_u32 s{sSKIP}, 99")
            A("    s_cbranch_scc0 L_edone")
            for k, op in enumerate(guarded):
                if k < len(guarded) - 1:
                    A(f"    s_cmp_le_u32 s{sSKIP}, {k}")
                    A(f"    s_cbranch_scc0 L_es{k}")
                keep = len(issued)
                store(*op)
                del issued[keep:]
                A(f"L_es{k}:")
            A("L_edone:")
        elif tok == "o":
            A("    ; --- DRAM reads starve behind a burst of writes, so all workgroups should get their last loads out together:")
            A("    v_mov_b32 v3, 1")
            A(f"    s_cmp_lt_u32 s{sWAVE}, 4")
            A("    s_cbranch_scc1 L_owatch")
            A("    s_mov_b64 exec, 1")
            A("    ds_add_u32 v30, v3 offset:196")
            A("    s_mov_b64 exec, -1")
            A("    s_branch L_odone")
            A("L_owatch:")
            A(f"    s_bfe_u32 s64, s{sSLOT}, 0x2000c")
            A(f"    s_bfe_u32 s65, s{sSLOT}, 0x1000a")
            A("    s_lshl1_add_u32 s64, s64, s65")
            A(f"    s_lshl1_add_u32 s65, s{sWAVE}, s64")
            A("    s_add_u32 s65, s65, 1")
            A("    s_and_b32 s66, s65, 1")
            A("    s_bfe_u32 s65, s65, 0x20001")
            A("    s_lshl2_add_u32 s65, s65, s66")
            if solo:
                A("    s_lshl_b32 s65, s65, 10")
            else:
                A("    s_lshl3_add_u32 s65, s65, s64")
                A("    s_lshl_b32 s65, s65, 7")
            A(f"    s_andn2_b32 s66, s{sSLOT}, 0x3fff")
            A("    s_add_u32 s66, s66, s65")
            A(f"    s_mov_b32 s{sCNT}, 0")
            A("L_oloop:")
            A(f"    s_load_dword s{sT}, s[14:15], s66 offset:{SG:#x} glc")
            A(f"    s_add_u32 s{sCNT}, s{sCNT}, 1")
            A("    s_waitcnt lgkmcnt(0)")
            A(f"    s_cmp_eq_u32 s{sT}, s{sTAG}")
            A("    s_cbranch_scc1 L_ohit")
            A("    ds_read_b64 v[4:5], v30 offset:192")
            A("    s_waitcnt lgkmcnt(0)")
            A("    v_lshl_add_u32 v4, v4, 2, v5")
            A(f"    s_cmp_ge_u32 s{sCNT}, {omax}")
            A(f"    v_readfirstlane_b32 s{sT}, v4")
            A("    s_cbranch_scc1 L_odone")
            A(f"    s_cmp_lt_u32 s{sT}, {ocnt}")
            A("    s_cbranch_scc1 L_oloop")
            A("    s_branch L_odone")
            A("L_ohit:")
            A("    ds_write_b32 v30, v3 offset:192")
            A("L_odone:")
        elif c == "l":
            for _ in range(n or 1): load(*lq.pop(0))
        elif c == "s":
            for _ in range(n or 1):
                op = sq.pop(0)
                if op in nq: nq.remove(op)
                store(*op)
        elif c == "y":
            for _ in range(n or 1):
                op = sq.pop(0); nq.remove(op)
                store(*op)
                L[-1] = L[-1].replace(" sc0 sc1", "")
        elif c == "z":
            A(f"    s_cmp_ge_u32 s{sCNT}, {zthr}")
            for i in range(n or 1):
                op = sq.pop(0); nq.remove(op)
                store(*op)
                st = L.pop()
                A(f"    s_cbranch_scc1 L_za{i}")
                A(st)
                A(f"    s_branch L_zb{i}")
                A(f"L_za{i}:")
                A(st.replace(" sc0 sc1", ""))
                A(f"L_zb{i}:")
        elif c == "n":
            for _ in range(n or 1): norm(*nq.pop(0))
        elif c == "t":
            for _ in range(n or 1): tally(*tq.pop(0))
        elif tok == "U":
            A(f"    s_bfe_u32 s64, s{sSLOT}, 0x2000c")
            A(f"    s_bfe_u32 s65, s{sSLOT}, 0x1000a")
            A("    s_lshl1_add_u32 s64, s64, s65")
            A(f"    s_and_b32 s66, s{sWAVE}, 1")
            A(f"    s_lshr_b32 s65, s{sWAVE}, 1")
            A("    s_lshl2_add_u32 s65, s65, s66")
            A("    s_lshl3_add_u32 s65, s65, s64")
            A("    s_lshl_b32 s65, s65, 7")
            A(f"    s_andn2_b32 s66, s{sSLOT}, 0x3fff")
            A("    s_add_u32 s66, s66, s65")
            A(f"    s_load_dword s43, s[14:15], s66 offset:{SG:#x} glc")
        elif tok == "W":
            A(f"    s_cmp_eq_u32 s43, s{sTAG}")
            A("    s_cbranch_scc0 L_now")
            A("    v_mov_b32 v3, 1")
            A("    ds_write_b32 v30, v3 offset:192")
            A("L_now:")
        elif c == "A":
            A(f"    ; --- {UN[n]}: hand {{mean, tag}}, {{M2, tag}} of this half to the partner" if solo else f"    ; --- {UN[n]}: every wave hands {{mean, tag}}, {{M2, tag}} of this half to its twin in the partner")
            A(f"    v_mov_b32 v{vH[n]}, v8")
            A(f"    v_mov_b32 v{vH[n]+1}, v11")
            A("    v_readfirstlane_b32 s64, v8")
            A("    v_readfirstlane_b32 s66, v11")
            A(f"    s_mov_b32 s{sT}, s{sSLOT}" if solo else f"    s_xor_b32 s{sT}, s{sPART}, 0x400")
            if addonly:
                A(f"    s_not_b32 s{sT+1}, s{sTAG}")
                A(f"    s_sub_u32 s64, s64, s{sT+1}")
                A(f"    s_subb_u32 s65, s{sTAG}, s{sT+1}")
                A(f"    s_atomic_add_x2 s[64:65], s[14:15], s{sT} offset:{UO*(n-1)}")
                A(f"    s_sub_u32 s66, s66, s{sT+1}")
                A(f"    s_subb_u32 s67, s{sTAG}, s{sT+1}")
                A(f"    s_atomic_add_x2 s[66:67], s[14:15], s{sT} offset:{UO*(n-1)+8}")
                if solo: A(f"L_nopub{n}:")
            else:
                A(f"    s_mov_b32 s65, s{sTAG}")
                A(f"    s_mov_b32 s67, s{sTAG}")
                A(f"    s_atomic_swap_x2 s[64:65], s[14:15], s{sT} offset:{UO*(n-1)}")
                A(f"    s_atomic_swap_x2 s[66:67], s[14:15], s{sT} offset:{UO*(n-1)+8}")
        elif c == "u":
            assert not any(o[0] == 0 for o in sq + guarded)
            for _ in range(n or 1):
                k = int(lo2[len(unpacked)])
                assert (2, k) not in tq
                unpacked.add((2, k))
                for j in range(4):
                    r = D[2] + 4 * k + j
                    t = D[0] + 8 * k + 2 * j
                    A(f"    v_lshlrev_b32 v{t}, 16, v{r}")
                    A(f"    v_and_b32 v{t+1}, s{sMASK}, v{r}")
        elif c == "R": reduce(n)
        elif c == "C":
            if solo and n:
                A(f"    s_cmp_eq_u32 s{sWAVE}, 0")
                A(f"    s_cbranch_scc0 L_nopub{n}")
            combine(n)
        elif c == "F":
            finalize(n)
            if solo and n:
                ac = vAC[n]
                A(f"    v_mov_b32 v{ac+3}, 1")
                A("    s_mov_b64 exec, 1")
                A(f"    ds_write_b128 v30, v[{ac}:{ac+3}] offset:{192 + 16*n}")
                A("    s_mov_b64 exec, -1")
                A(f"    s_branch L_bc{n}")
                A(f"L_get{n}:                                    ; the other waves take {{a, -mu, b, ready}} from LDS")
                A(f"    s_mov_b32 s{sCNT}, 0")
                A(f"L_spin{n}:")
                A(f"    ds_read_b128 v[{ac}:{ac+3}], v30 offset:{192 + 16*n}")
                A(f"    s_add_u32 s{sCNT}, s{sCNT}, 1")
                A(f"    s_cmp_lt_u32 s{sCNT}, {spin*8}")
                A("    s_cbranch_scc0 L_end")
                A("    s_waitcnt lgkmcnt(0)")
                A(f"    v_cmp_eq_u32 vcc, 0, v{ac+3}")
                A("    s_and_b64 vcc, exec, vcc")
                A(f"    s_cbranch_vccnz L_spin{n}")
                A(f"L_bc{n}:")
        elif c == "P": publish(n)
        elif c == "Q":
            if solo:
                A(f"    s_cmp_eq_u32 s{sWAVE}, 0")
                A(f"    s_cbranch_scc0 L_noq{n}")
            poll(n); pre.add(n)
            if solo: A(f"L_noq{n}:")
        elif c == "G":
            if solo:
                A(f"    s_cmp_eq_u32 s{sWAVE}, 0")
                A(f"    s_cbranch_scc0 L_get{n}")
            partner(n)
        elif c == "w": A(f"    s_waitcnt vmcnt({n})")
        elif c == "p": A(f"    s_setprio {n}")
        elif c == "@": stamp(n)
        else: raise ValueError(tok)
    assert not lq and not sq and not tq, (lq, sq, tq)
    if stamps:
        A("L_last:")
        A("    s_waitcnt vmcnt(0)")
        stamp(5)
        A("    s_getreg_b32 s60, hwreg(HW_REG_XCC_ID)")
        A("    s_and_b32 s60, s60, 7")
        A("    s_lshl_b32 s61, s82, 4"); A("    s_or_b32 s60, s60, s61")
        A("    s_lshl_b32 s61, s83, 12"); A("    s_or_b32 s60, s60, s61")
        A("    s_lshl_b32 s61, s84, 20"); A("    s_or_b32 s60, s60, s61")
        A("    s_waitcnt lgkmcnt(0)")
        A(f"    s_lshl_b32 s61, s2, 3"); A(f"    s_add_u32 s61, s61, s{sWAVE}"); A("    s_lshl_b32 s61, s61, 5")
        A("    v_mov_b32 v3, s61")
        for i in range(6): A(f"    v_mov_b32 v{D0+i}, s{stamp_regs[i]}")
        A(f"    v_mov_b32 v{D0+6}, s60"); A(f"    v_mov_b32 v{D0+7}, 0x5a5a5a5a")
        A("    s_mov_b64 exec, 1")
        sc = " sc0 sc1" if enc >= 0 else ""
        A(f"    global_store_dwordx4 v3, v[{D0}:{D0+3}], s[14:15]{sc}")
        A(f"    global_store_dwordx4 v3, v[{D0+4}:{D0+7}], s[14:15] offset:16{sc}")
        if enc >= 0:
            A("    s_mov_b64 exec, -1")
            A("    s_cmp_eq_u32 s2, 100")
            A("    s_cbranch_scc0 L_end")
            A(f"    s_cmp_eq_u32 s{sWAVE}, 0")
            A("    s_cbranch_scc0 L_end")
            A("L_e0:")
            A("    s_sleep 4")
            A("    s_memrealtime s[62:63]")
            A("    s_waitcnt lgkmcnt(0)")
            A("    s_sub_u32 s62, s62, s70")
            A("    s_cmp_lt_u32 s62, 2600")
            A("    s_cbranch_scc1 L_e0")
            A("    v_lshlrev_b32 v3, 5, v0")
            for i in range(32):
                A(f"    global_load_dword v{D0+2*i}, v3, s[14:15] sc1")
                A(f"    global_load_dword v{D0+2*i+1}, v3, s[14:15] offset:{4*enc} sc1")
                A("    v_add_u32 v3, 2048, v3")
                if i % 16 == 15: A("    s_waitcnt vmcnt(0)")
            A("    v_mov_b32 v4, 0x7fffffff")
            A("    v_mov_b32 v5, 0" if encs == 1 else "    v_mov_b32 v5, 0x80000000")
            for i in range(32):
                A(f"    v_subrev_u32 v6, s70, v{D0+2*i}")
                A("    v_min_i32 v4, v4, v6")
                if (encw == 1 and i >= 2) or (encw == 2 and i < 2) or not e0 <= i < e1: continue
                A(f"    v_subrev_u32 v6, s70, v{D0+2*i+1}")
                A("    v_add_u32 v5, v5, v6" if encs == 1 else "    v_max_i32 v5, v5, v6")
            A("    s_mov_b32 s64, 0x7fffffff")
            A("    s_mov_b32 s65, 0" if encs == 1 else "    s_mov_b32 s65, 0x80000000")
            for i in range(64):
                A(f"    v_readlane_b32 s66, v4, {i}")
                A(f"    v_readlane_b32 s67, v5, {i}")
                A("    s_min_i32 s64, s64, s66")
                if el0 <= i < el1: A("    s_add_u32 s65, s65, s67" if encs == 1 else "    s_max_i32 s65, s65, s67")
            if encs == 1: A(f"    s_ashr_i32 s65, s65, {esh}")
            A("    s_sub_u32 s60, s65, s64")
            A("    v_mov_b32 v3, 0")
            A("    v_mov_b32 v4, s60")
            A("    global_store_dword v3, v4, s[12:13] offset:16")
            A(f"    s_mul_i32 s60, s60, {encm}")
            A("    s_min_u32 s60, s60, 20000")
            A("    s_add_u32 s60, s60, 4000")
            A("    s_add_u32 s60, s60, s64")
            A("L_e1:")
            A("    s_sleep 1")
            A("    s_memrealtime s[62:63]")
            A("    s_waitcnt lgkmcnt(0)")
            A("    s_sub_u32 s62, s62, s70")
            A("    s_cmp_lt_u32 s62, s60")
            A("    s_cbranch_scc1 L_e1")
    else:
        A("L_last:")
    if rdiag:
        A("    s_cmp_eq_u32 s2, 0")
        A("    s_cbranch_scc0 L_end")
        A(f"    s_cmp_eq_u32 s{sWAVE}, 0")
        A("    s_cbranch_scc0 L_end")
        A("    s_getreg_b32 s60, hwreg(HW_REG_XCC_ID)")
        A("    s_and_b32 s60, s60, 7")
        A("    s_cbranch_scc0 L_end")
        A("    s_memrealtime s[70:71]")
        A("L_rw:")
        A("    s_sleep 8")
        A("    s_memrealtime s[62:63]")
        A("    s_waitcnt lgkmcnt(0)")
        A("    s_sub_u32 s62, s62, s70")
        A("    s_cmp_lt_u32 s62, 3000")
        A("    s_cbranch_scc1 L_rw")
        A("    v_mov_b32 v3, 0")
        A("    s_mov_b64 exec, 1")
        for bi, (base, off, step) in enumerate((("s[4:5]", 0x8000, 1 << 21), ("s[10:11]", 0x7000, 1 << 21), ("s[4:5]", 0x108000, 1 << 21))):
            A("    s_mov_b32 s72, 0")
            A("    s_mov_b32 s73, 0")
            A(f"    s_mov_b32 s65, {off}")
            A(f"L_rr{bi}:")
            A("    s_mov_b32 s67, 5000")
            for rep in range(3):
                A("    s_memtime s[60:61]")
                A("    s_waitcnt lgkmcnt(0)")
                A(f"    s_load_dword s64, {base}, s65 glc")
                A("    s_waitcnt lgkmcnt(0)")
                A("    s_memtime s[62:63]")
                A("    s_waitcnt lgkmcnt(0)")
                A("    s_sub_u32 s62, s62, s60")
                A("    s_min_u32 s67, s67, s62")
            A("    s_cmp_gt_u32 s67, 490")
            A("    s_cselect_b32 s66, 1, 0")
            A("    s_lshl_b32 s66, s66, s73")
            A("    s_or_b32 s72, s72, s66")
            A(f"    s_add_u32 s65, s65, {step}")
            A("    s_add_u32 s73, s73, 1")
            A("    s_cmp_lt_u32 s73, 32")
            A(f"    s_cbranch_scc1 L_rr{bi}")
            A("    s_xor_b32 s72, s72, 0xaaaaaaaa")
            A("    v_mov_b32 v4, s72")
            A(f"    global_store_dword v3, v4, s[12:13] offset:{8+4*bi}")
    if wdiag:
        A("    s_waitcnt vmcnt(0)")
        A("    s_cmp_eq_u32 s90, 0x13572468")
        A("    s_cbranch_scc0 L_wmark")
        A("    s_mov_b32 s91, 2000")
        if wdiag == 2:
            A(f"    s_bfe_u32 s92, s{sVW}, 0x1001b")
            A("    s_mul_i32 s92, s92, 2000")
            A("    s_add_u32 s91, s91, s92")
        A("    s_memrealtime s[92:93]")
        A("L_wspin:")
        A("    s_sleep 4")
        A("    s_memrealtime s[94:95]")
        A("    s_waitcnt lgkmcnt(0)")
        A("    s_sub_u32 s94, s94, s92")
        A("    s_cmp_lt_u32 s94, s91")
        A("    s_cbranch_scc1 L_wspin")
        A("L_wmark:")
        A("    s_cmp_eq_u32 s2, 255")
        A("    s_cbranch_scc0 L_end")
        A("    v_mov_b32 v3, 0")
        A("    v_mov_b32 v4, 0x13572468")
        A("    global_store_dword v3, v4, s[14:15] offset:64 sc0 sc1")
    A("L_end:")
    A("    s_endpgm")
    nv = D0 + (132 if reb else 128)
    A('.section .rodata,"a"'); A(".p2align 6"); A(f".amdhsa_kernel {NAME}")
    A(f"  .amdhsa_next_free_vgpr {nv}"); A(f"  .amdhsa_next_free_sgpr {96 if (stamps or wdiag or rdiag or farm) else 72}"); A(f"  .amdhsa_accum_offset {nv}")
    A("  .amdhsa_group_segment_fixed_size 0"); A("  .amdhsa_kernarg_size 48"); A("  .amdhsa_user_sgpr_count 2")
    A("  .amdhsa_user_sgpr_kernarg_segment_ptr 1"); A("  .amdhsa_system_sgpr_workgroup_id_x 1")
    A("  .amdhsa_float_denorm_mode_32 3"); A(".end_amdhsa_kernel")
    return "\n".join(L) + "\n"

if __name__ == "__main__":
    p = argparse.ArgumentParser()
    p.add_argument("-o", required=True)
    for k, prm in inspect.signature(gen).parameters.items():
        p.add_argument("--" + k, type=(lambda s: int(s, 0)) if isinstance(prm.default, int) else str, default=prm.default)
    a = vars(p.parse_args())
    o = a.pop("o")
    if a["sched"] == "def": a["sched"] = DEF_SCHED
    if a["sched"] == "defs": a["sched"] = DEF_SCHED.replace("F0", "F0 @3").replace("F2", "F2 @4")
    open(o, "w").write(gen(**a))
```
